```python
import torch

def _softmax(x, axis=-1):
    return torch.softmax(x, dim=axis)
def _gelu(x):
    return torch.nn.functional.gelu(x, approximate="tanh")
def _silu(x):
    return torch.nn.functional.silu(x)
def _sigmoid(x):
    return torch.sigmoid(x)
def _layernorm(x, axis=-1, eps=1e-5):
    m = x.mean(dim=axis, keepdim=True)
    v = x.var(dim=axis, keepdim=True, unbiased=False)
    return (x - m) / torch.sqrt(v + eps)
def _scatter_add(tgt, idx, src, axis=0):
    return tgt.clone().index_add_(axis, idx, src)
def _segment_sum(src, seg, n):
    out = torch.zeros((n,) + src.shape[1:], dtype=src.dtype)
    return out.index_add_(0, seg, src)
def _pad(x, pw):
    flat = tuple(v for pair in reversed(pw) for v in pair)
    return torch.nn.functional.pad(x, flat)

kernel_name = 'gated_mix__gqa_block_cached__glu_gated_glu__decode'

def setup_inputs():

    _w = (lambda a: (lambda t: t.to(torch.bfloat16) if t.is_floating_point() else t)(torch.as_tensor(a)))
    def _A_setup():
        B, Sq, D = 4, 1, 512
        Hq, Hkv, Sk, Dh = 32, 8, 8192, 128
        assert Hq % Hkv == 0, (Hq, Hkv)
        return {
            "x": _w((lambda *s: torch.randn(*s, dtype=torch.bfloat16) * 0.05)(B, Sq, D)),
            "k_cache": _w((lambda *s: torch.randn(*s, dtype=torch.bfloat16) * 6.4)(B, Hkv, Sk, Dh)),
            "v_cache": _w((lambda *s: torch.randn(*s, dtype=torch.bfloat16) * 3.2)(B, Hkv, Sk, Dh)),
            "wq": _w((lambda *s: torch.randn(*s, dtype=torch.bfloat16) * 6.4)(D, Hq * Dh) * (D ** -0.5)),
            "wo": _w((lambda *s: torch.randn(*s, dtype=torch.bfloat16) * 3.2)(Hq * Dh, D) * ((Hq * Dh) ** -0.5)),
        }
    _A_in = _A_setup()

    def _B_setup():
        B, S, D, F = 4, 1, 512, 1792
        return {
            "x": _w((lambda *s: torch.randn(*s, dtype=torch.bfloat16) * 0.05)(B, S, D)),
            "w_gate": _w((lambda *s: torch.randn(*s, dtype=torch.bfloat16) * 3.2)(D, F)),
            "w_up": _w((lambda *s: torch.randn(*s, dtype=torch.bfloat16) * 0.2)(D, F)),
            "w_down": _w((lambda *s: torch.randn(*s, dtype=torch.bfloat16) * 0.2)(F, D)),
        }
    _B_in = _B_setup()

    return {
        "A_x": _A_in["x"],
        "A_k_cache": _A_in["k_cache"],
        "A_v_cache": _A_in["v_cache"],
        "A_wq": _A_in["wq"],
        "A_wo": _A_in["wo"],
        "B_x": _B_in["x"],
        "B_w_gate": _B_in["w_gate"],
        "B_w_up": _B_in["w_up"],
        "B_w_down": _B_in["w_down"],
        "gate_w": _w((lambda *s: torch.randn(*s, dtype=torch.bfloat16) * 0.05)(512) * 16.0),
    }

def reference(A_x, A_k_cache, A_v_cache, A_wq, A_wo, B_x, B_w_gate, B_w_up, B_w_down, gate_w):
    def _A_ref(x, k_cache, v_cache, wq, wo):
        B, Sq, D = x.shape
        Hq, Dh = 32, 128
        Hkv = k_cache.shape[1]
        rep = Hq // Hkv
        q = (lambda x, *d: x.permute(*d))((x @ wq).reshape(B, Sq, Hq, Dh), 0, 2, 1, 3)
        k = (lambda x, n, axis: torch.repeat_interleave(x, n, dim=axis))(k_cache, rep, axis=1)
        v = (lambda x, n, axis: torch.repeat_interleave(x, n, dim=axis))(v_cache, rep, axis=1)
        scores = torch.einsum("bhqd,bhkd->bhqk", q, k) * (Dh ** -0.5)
        p = _softmax(scores, axis=-1)
        o = torch.einsum("bhqk,bhkd->bhqd", p, v)
        return (lambda x, *d: x.permute(*d))(o, 0, 2, 1, 3).reshape(B, Sq, Hq * Dh) @ wo

    def _B_ref(x, w_gate, w_up, w_down):
        g = torch.einsum("bsd,df->bsf", x, w_gate)
        u = torch.einsum("bsd,df->bsf", x, w_up)
        h = _sigmoid(g) * u
        return torch.einsum("bsf,fd->bsd", h, w_down)

    x = A_x
    g = _sigmoid((x * gate_w).sum(-1, keepdims=True))
    a = _A_ref(x, A_k_cache, A_v_cache, A_wq, A_wo)
    b = _B_ref(x, B_w_gate, B_w_up, B_w_down)
    return g * a + (1 - g) * b
```

```python
import sys
PFX = "gated_mix__gqa_block_cached__glu_gated_glu__decode"
QWS, HWS, OWS, PWS = 0, 0x8000, 0xC000, 0x20000
WS_SIZE = 0x10000000
CSC = 0.08838834764831845 * 1.4426950408889634
import struct
def f2u(f): return struct.unpack("<I", struct.pack("<f", f))[0]

class A:
    def __init__(s): s.l = []
    def __call__(s, x): s.l.append("  " + x)
    def lab(s, x): s.l.append(x + ":")
    def txt(s): return "\n".join(s.l) + "\n"

def srd(a, d, base, size):
    a(f"s_mov_b32 s{d}, s{base}")
    a(f"s_and_b32 s{d+1}, s{base+1}, 0xffff")
    a(f"s_mov_b32 s{d+2}, {size}")
    a(f"s_mov_b32 s{d+3}, 0x00020000")

def kd(name, vgpr, sgpr=96):
    acc = min(256, ((vgpr + 3)//4)*4)
    return f""".p2align 6
.amdhsa_kernel {name}
  .amdhsa_next_free_vgpr {vgpr}
  .amdhsa_next_free_sgpr {sgpr}
  .amdhsa_accum_offset {acc}
  .amdhsa_group_segment_fixed_size 0
  .amdhsa_kernarg_size 104
  .amdhsa_user_sgpr_count 2
  .amdhsa_user_sgpr_kernarg_segment_ptr 1
  .amdhsa_system_sgpr_workgroup_id_x 1
.end_amdhsa_kernel
"""
def kstart(a, name):
    a.l.append(f".globl {name}\n.p2align 8\n.type {name},@function\n{name}:")

def rbf(a, v):
    a(f"v_cvt_pk_bf16_f32 v{v}, v{v}, v{v}")
    a(f"v_lshlrev_b32 v{v}, 16, v{v}")

def sigmoid(a, v, t):
    a(f"v_mul_f32 v{t}, 0xbfb8aa3b, v{v}")
    a(f"v_exp_f32 v{t}, v{t}")
    a("s_nop 0")
    a(f"v_add_f32 v{t}, 1.0, v{t}")
    a(f"v_rcp_f32 v{v}, v{t}")
    a("s_nop 0")

def gen_k1():
    a = A(); name = PFX + "_k1_kernel"
    kstart(a, name)
    a("s_cmp_ge_u32 s2, 368")
    a("s_cbranch_scc1 K1_END")
    a("s_load_dwordx2 s[4:5], s[0:1], 0")
    a("s_load_dwordx2 s[6:7], s[0:1], 24")
    a("s_load_dwordx4 s[8:11], s[0:1], 48")
    a("s_load_dwordx2 s[12:13], s[0:1], 96")
    a("v_lshrrev_b32 v2, 4, v0")
    a("v_and_b32 v3, 3, v0")
    a("v_lshlrev_b32 v4, 10, v3")
    a("v_lshl_add_u32 v4, v2, 4, v4")
    a("v_and_b32 v7, 15, v0")
    a("v_lshrrev_b32 v7, 2, v7")
    a("v_lshl_add_u32 v7, v2, 3, v7")
    a("v_lshlrev_b32 v7, 5, v7")
    a("v_lshl_add_u32 v7, v3, 3, v7")
    a("v_lshrrev_b32 v5, 1, v0")
    a("v_and_b32 v6, 1, v0")
    a("v_and_b32 v8, 15, v0")
    a("s_waitcnt lgkmcnt(0)")
    srd(a, 16, 4, 4096)
    srd(a, 28, 12, WS_SIZE)
    for j in range(16):
        a(f"buffer_load_dwordx4 v[{64+4*j}:{67+4*j}], v4, s[16:19], 0 offen offset:{j*64}")
    a("s_cmp_ge_u32 s2, 256")
    a("s_cbranch_scc1 K1_H")
    srd(a, 20, 6, 512*8192)
    a("v_mul_u32_u24 v5, 8192, v5")
    a("v_lshl_add_u32 v5, v6, 4, v5")
    a("s_lshl_b32 s32, s2, 5")
    for i in range(16):
        a(f"s_mov_b32 m0, {i*1024}")
        a(f"s_add_u32 s33, s32, {i*32*8192}")
        a(f"buffer_load_dwordx4 v5, s[20:23], s33 offen lds")
    a("s_waitcnt vmcnt(0)")
    for j in range(16):
        a(f"ds_read_b64_tr_b16 v[{128+4*j}:{129+4*j}], v7 offset:{j*1024}")
        a(f"ds_read_b64_tr_b16 v[{130+4*j}:{131+4*j}], v7 offset:{j*1024+128}")
    a("s_waitcnt lgkmcnt(0)")
    for j in range(16):
        c = "0" if j == 0 else "v[16:19]"
        a(f"v_mfma_f32_16x16x32_bf16 v[16:19], v[{64+4*j}:{67+4*j}], v[{128+4*j}:{131+4*j}], {c}")
    a("s_nop 7"); a("s_nop 1")
    a("v_cvt_pk_bf16_f32 v20, v16, v17")
    a("v_cvt_pk_bf16_f32 v21, v18, v19")
    a("v_lshlrev_b32 v9, 1, v8")
    a("v_add_u32 v9, s32, v9")
    a("v_cmp_gt_u32 vcc, 16, v0")
    a("s_and_saveexec_b64 s[34:35], vcc")
    a(f"buffer_store_short v20, v9, s[28:31], 0 offen offset:{QWS}")
    a(f"s_movk_i32 s36, 0x2000")
    a(f"buffer_store_short_d16_hi v20, v9, s[28:31], s36 offen offset:{QWS}")
    a(f"s_movk_i32 s36, 0x4000")
    a(f"buffer_store_short v21, v9, s[28:31], s36 offen offset:{QWS}")
    a(f"s_movk_i32 s36, 0x6000")
    a(f"buffer_store_short_d16_hi v21, v9, s[28:31], s36 offen offset:{QWS}")
    a("s_endpgm")
    a.lab("K1_H")
    srd(a, 20, 8, 512*3584)
    srd(a, 24, 10, 512*3584)
    a("v_mul_u32_u24 v5, 3584, v5")
    a("v_lshl_add_u32 v5, v6, 4, v5")
    a("s_sub_u32 s32, s2, 256")
    a("s_lshl_b32 s32, s32, 5")
    for m in range(2):
        for i in range(16):
            a(f"s_mov_b32 m0, {m*16384+i*1024}")
            a(f"s_add_u32 s33, s32, {i*32*3584}")
            a(f"buffer_load_dwordx4 v5, s[{20+4*m}:{23+4*m}], s33 offen lds")
    a("s_waitcnt vmcnt(0)")
    for m in range(2):
        for j in range(16):
            a(f"ds_read_b64_tr_b16 v[{128+4*j}:{129+4*j}], v7 offset:{m*16384+j*1024}")
            a(f"ds_read_b64_tr_b16 v[{130+4*j}:{131+4*j}], v7 offset:{m*16384+j*1024+128}")
        a("s_waitcnt lgkmcnt(0)")
        d = 16 + 4*m
        for j in range(16):
            c = "0" if j == 0 else f"v[{d}:{d+3}]"
            a(f"v_mfma_f32_16x16x32_bf16 v[{d}:{d+3}], v[{64+4*j}:{67+4*j}], v[{128+4*j}:{131+4*j}], {c}")
        a("s_nop 7"); a("s_nop 1")
    for r in range(4):
        rbf(a, 16+r); rbf(a, 20+r)
        sigmoid(a, 16+r, 24)
        rbf(a, 16+r)
        a(f"v_mul_f32 v{16+r}, v{16+r}, v{20+r}")
    a("v_cvt_pk_bf16_f32 v20, v16, v17")
    a("v_cvt_pk_bf16_f32 v21, v18, v19")
    a("v_lshlrev_b32 v9, 1, v8")
    a("v_add_u32 v9, s32, v9")
    a("v_cmp_gt_u32 vcc, 16, v0")
    a("s_and_saveexec_b64 s[34:35], vcc")
    a(f"s_mov_b32 s36, {HWS}")
    a(f"buffer_store_short v20, v9, s[28:31], s36 offen")
    a(f"s_mov_b32 s36, {HWS+3584}")
    a(f"buffer_store_short_d16_hi v20, v9, s[28:31], s36 offen")
    a(f"s_mov_b32 s36, {HWS+2*3584}")
    a(f"buffer_store_short v21, v9, s[28:31], s36 offen")
    a(f"s_mov_b32 s36, {HWS+3*3584}")
    a(f"buffer_store_short_d16_hi v21, v9, s[28:31], s36 offen")
    a.lab("K1_END")
    a("s_endpgm")
    return a.txt(), kd(name, 192), name

def gen_k2(NT=" nt"):
    a = A(); name = PFX + "_k2_kernel"
    kstart(a, name)
    a("s_cmp_ge_u32 s2, 256")
    a("s_cbranch_scc1 K2_END")
    a("s_load_dwordx4 s[4:7], s[0:1], 8")
    a("s_load_dwordx4 s[8:11], s[0:1], 88")
    a("v_lshrrev_b32 v1, 6, v0")
    a("v_and_b32 v2, 63, v0")
    a("v_readfirstlane_b32 s20, v1")
    a("v_lshrrev_b32 v3, 4, v2")
    a("v_and_b32 v4, 15, v2")
    a("s_lshl_b32 s21, s2, 18")
    a("s_lshl_b32 s22, s20, 15")
    a("s_add_u32 s21, s21, s22")
    a("s_lshl_b32 s23, s20, 14")
    a("v_lshlrev_b32 v5, 8, v4")
    a("v_lshl_add_u32 v5, v3, 4, v5")
    a("v_lshlrev_b32 v6, 1, v3")
    a("v_xor_b32 v7, v4, v6")
    a("v_lshlrev_b32 v7, 4, v7")
    a("v_lshl_add_u32 v7, v3, 8, v7")
    a("v_xor_b32 v8, 0x80, v7")
    a("s_waitcnt lgkmcnt(0)")
    srd(a, 12, 4, 0x4000000)
    srd(a, 16, 6, 0x4000000)
    srd(a, 24, 10, WS_SIZE)
    srd(a, 28, 8, 256)
    a("s_lshr_b32 s32, s2, 6")
    a("s_lshl_b32 s32, s32, 13")
    a("s_lshr_b32 s33, s2, 3")
    a("s_and_b32 s33, s33, 7")
    a("s_lshl_b32 s33, s33, 10")
    a("s_add_u32 s32, s32, s33")
    a("v_and_b32 v9, 3, v2")
    a("v_lshlrev_b32 v9, 8, v9")
    a("v_lshl_add_u32 v9, v3, 4, v9")
    for j in range(4):
        a(f"buffer_load_dwordx4 v[{16+4*j}:{19+4*j}], v9, s[24:27], s32 offen offset:{QWS+j*64}")
    KB = 64
    def issue_k(r):
        for T in range(4):
            a(f"s_add_u32 s34, s21, {r*16384+T*4096}")
            for j in range(4):
                q = KB + (T*4+j)*4
                a(f"buffer_load_dwordx4 v[{q}:{q+3}], v5, s[12:15], s34 offen offset:{j*64}{NT}")
    def issue_v(r):
        for i in range(16):
            a(f"s_add_u32 m0, s23, {i*1024}")
            a(f"s_add_u32 s34, s21, {r*16384+i*1024}")
            a(f"buffer_load_dwordx4 v{7+(i&1)}, s[16:19], s34 offen{NT} lds")
    issue_k(0); issue_v(0)
    a("v_lshrrev_b32 v10, 2, v4")
    a("v_and_b32 v11, 3, v4")
    a("v_lshl_add_u32 v12, v3, 2, v10")
    a("v_and_b32 v13, 7, v12")
    a("v_lshlrev_b32 v12, 8, v12")
    a("v_lshl_add_u32 v12, v11, 3, v12")
    a("v_add_u32 v12, s23, v12")
    for t in range(8):
        a(f"v_xor_b32 v14, {t}, v13")
        a(f"v_lshl_add_u32 v{40+t}, v14, 5, v12")
    a(f"s_mov_b32 s40, {f2u(CSC)}")
    S = 48
    O = 128
    P = 32
    VF = 160
    M, L, T0, T1, AL = 10, 11, 12, 13, 14
    for r in range(2):
        a("s_waitcnt vmcnt(16)")
        for T in range(4):
            for j in range(4):
                q = KB + (T*4+j)*4
                c = "0" if j == 0 else f"v[{S+4*T}:{S+4*T+3}]"
                a(f"v_mfma_f32_16x16x32_bf16 v[{S+4*T}:{S+4*T+3}], v[{q}:{q+3}], v[{16+4*j}:{19+4*j}], {c}")
        if r == 0:
            a("s_nop 7")
            issue_k(1)
        a("s_nop 7"); a("s_nop 1")
        a(f"v_max3_f32 v{T0}, v{S}, v{S+1}, v{S+2}")
        for k in range(3, 15, 2):
            a(f"v_max3_f32 v{T0}, v{T0}, v{S+k}, v{S+k+1}")
        a(f"v_max_f32 v{T0}, v{T0}, v{S+15}")
        a(f"v_mov_b32 v{T1}, v{T0}")
        a("s_nop 1")
        a(f"v_permlane32_swap_b32 v{T0}, v{T1}")
        a("s_nop 1")
        a(f"v_max_f32 v{T0}, v{T0}, v{T1}")
        a(f"v_mov_b32 v{T1}, v{T0}")
        a("s_nop 1")
        a(f"v_permlane16_swap_b32 v{T0}, v{T1}")
        a("s_nop 1")
        a(f"v_max_f32 v{T0}, v{T0}, v{T1}")
        if r == 0:
            a(f"v_mov_b32 v{M}, v{T0}")
        else:
            a(f"v_max_f32 v{T0}, v{T0}, v{M}")
            a(f"v_sub_f32 v{AL}, v{M}, v{T0}")
            a(f"v_mul_f32 v{AL}, s40, v{AL}")
            a(f"v_exp_f32 v{AL}, v{AL}")
            a(f"v_mov_b32 v{M}, v{T0}")
        a(f"v_mul_f32 v{T0}, s40, v{M}")
        for k in range(16):
            a(f"v_fma_f32 v{S+k}, v{S+k}, s40, -v{T0}")
        for k in range(16):
            a(f"v_exp_f32 v{S+k}, v{S+k}")
        a("s_nop 0")
        if r == 0:
            a(f"v_add_f32 v{L}, v{S}, v{S+1}")
            ks = 2
        else:
            a(f"v_fma_f32 v{L}, v{L}, v{AL}, v{S}")
            ks = 1
            for k in range(32):
                a(f"v_mul_f32 v{O+k}, v{O+k}, v{AL}")
        for k in range(ks, 16):
            a(f"v_add_f32 v{L}, v{L}, v{S+k}")
        for k in range(8):
            a(f"v_cvt_pk_bf16_f32 v{P+k}, v{S+2*k}, v{S+2*k+1}")
        a("s_waitcnt vmcnt(16)" if r == 0 else "s_waitcnt vmcnt(0)")
        for u in range(2):
            for t in range(8):
                a(f"ds_read_b64_tr_b16 v[{VF+4*t}:{VF+4*t+1}], v{40+t} offset:{u*8192}")
                a(f"ds_read_b64_tr_b16 v[{VF+4*t+2}:{VF+4*t+3}], v{40+t} offset:{u*8192+4096}")
            for t in range(8):
                a(f"s_waitcnt lgkmcnt({14-2*t})")
                c = "0" if (r == 0 and u == 0) else f"v[{O+4*t}:{O+4*t+3}]"
                a(f"v_mfma_f32_16x16x32_bf16 v[{O+4*t}:{O+4*t+3}], v[{VF+4*t}:{VF+4*t+3}], v[{P+4*u}:{P+4*u+3}], {c}")
            a("s_nop 7")
        if r == 0:
            issue_v(1)
    a(f"v_mov_b32 v{T1}, v{L}")
    a("s_nop 1")
    a(f"v_permlane32_swap_b32 v{L}, v{T1}")
    a("s_nop 1")
    a(f"v_add_f32 v{L}, v{L}, v{T1}")
    a(f"v_mov_b32 v{T1}, v{L}")
    a("s_nop 1")
    a(f"v_permlane16_swap_b32 v{L}, v{T1}")
    a("s_nop 1")
    a(f"v_add_f32 v{L}, v{L}, v{T1}")
    a("v_lshlrev_b32 v5, 9, v4")
    a("v_lshl_add_u32 v5, v3, 4, v5")
    a("v_add_u32 v5, s23, v5")
    a("v_lshlrev_b32 v6, 3, v4")
    a("v_add_u32 v6, s23, v6")
    a("v_cmp_gt_u32 vcc, 4, v4")
    a("s_and_saveexec_b64 s[36:37], vcc")
    for t in range(8):
        a(f"ds_write_b128 v5, v[{O+4*t}:{O+4*t+3}] offset:{t*64}")
    a(f"ds_write_b64 v6, v[{M}:{L}] offset:2048")
    a("s_mov_b64 exec, s[36:37]")
    a("s_waitcnt lgkmcnt(0)")
    a("s_barrier")
    a("v_lshrrev_b32 v5, 7, v0")
    a("v_lshlrev_b32 v5, 3, v5")
    a("v_lshlrev_b32 v6, 2, v0")
    a("v_add_u32 v7, 0x10000, v5")
    a("v_add_u32 v8, 0x10000, v6")
    for w in range(8):
        a(f"ds_read_b64 v[{16+2*w}:{17+2*w}], v{5 if w<4 else 7} offset:{(w&3)*16384+2048}")
        a(f"ds_read_b32 v{32+w}, v{6 if w<4 else 8} offset:{(w&3)*16384}")
    a("s_waitcnt lgkmcnt(0)")
    def merge(nm):
        a("v_max3_f32 v10, v16, v18, v20")
        a("v_max3_f32 v10, v10, v22, v24")
        a("v_max3_f32 v10, v10, v26, v28")
        a("v_max_f32 v10, v10, v30")
        for w in range(8):
            a(f"v_sub_f32 v{16+2*w}, v{16+2*w}, v10")
            a(f"v_mul_f32 v{16+2*w}, s40, v{16+2*w}")
            a(f"v_exp_f32 v{16+2*w}, v{16+2*w}")
        a("s_nop 0")
        a("v_mul_f32 v11, v16, v17")
        a("v_mul_f32 v12, v16, v32")
        for w in range(1, 8):
            a(f"v_fma_f32 v11, v{16+2*w}, v{17+2*w}, v11")
            a(f"v_fma_f32 v12, v{16+2*w}, v{32+w}, v12")
    merge(0)
    a("s_lshl_b32 s34, s2, 12")
    a(f"s_add_u32 s34, s34, {PWS}")
    a("buffer_store_dword v12, v6, s[24:27], s34 offen sc1")
    a("v_and_b32 v7, 127, v0")
    a("v_cmp_eq_u32 vcc, 0, v7")
    a("s_and_saveexec_b64 s[36:37], vcc")
    a("buffer_store_dwordx2 v[10:11], v5, s[24:27], s34 offen offset:2048 sc1")
    a("s_mov_b64 exec, s[36:37]")
    a("s_waitcnt vmcnt(0)")
    a("s_barrier")
    a("s_cmp_lg_u32 s20, 0")
    a("s_cbranch_scc1 K2_SKIP")
    a("s_lshr_b32 s35, s2, 3")
    a("s_lshl_b32 s35, s35, 2")
    a("v_mov_b32 v8, 1")
    a("v_mov_b32 v9, 0")
    a("v_cmp_eq_u32 vcc, 0, v0")
    a("s_and_saveexec_b64 s[36:37], vcc")
    a("buffer_atomic_add v8, v9, s[28:31], s35 offen sc0 sc1")
    a("s_waitcnt vmcnt(0)")
    a("ds_write_b32 v9, v8 offset:4096")
    a("s_waitcnt lgkmcnt(0)")
    a("s_mov_b64 exec, s[36:37]")
    a.lab("K2_SKIP")
    a("s_barrier")
    a("v_mov_b32 v9, 0")
    a("ds_read_b32 v8, v9 offset:4096")
    a("s_waitcnt lgkmcnt(0)")
    a("v_readfirstlane_b32 s35, v8")
    a("s_cmp_lg_u32 s35, 7")
    a("s_cbranch_scc1 K2_END")
    a("s_and_b32 s34, s2, 0xf8")
    a("s_lshl_b32 s34, s34, 12")
    a(f"s_add_u32 s34, s34, {PWS}")
    for w in range(8):
        a(f"s_add_u32 s35, s34, {w*4096}")
        a(f"buffer_load_dwordx2 v[{16+2*w}:{17+2*w}], v5, s[24:27], s35 offen offset:2048 sc1")
        a(f"buffer_load_dword v{32+w}, v6, s[24:27], s35 offen sc1")
    a("s_waitcnt vmcnt(0)")
    merge(1)
    a("v_rcp_f32 v11, v11")
    a("s_nop 0")
    a("v_mul_f32 v12, v12, v11")
    a("v_cvt_pk_bf16_f32 v12, v12, v12")
    a("v_lshlrev_b32 v6, 1, v0")
    a(f"s_add_u32 s32, s32, {OWS}")
    a("buffer_store_short v12, v6, s[24:27], s32 offen")
    a.lab("K2_END")
    a("s_endpgm")
    return a.txt(), kd(name, 192), name

def gen_k3():
    a = A(); name = PFX + "_k3_kernel"
    kstart(a, name)
    a("s_cmp_ge_u32 s2, 32")
    a("s_cbranch_scc1 K3_END")
    a("s_load_dwordx2 s[4:5], s[0:1], 0")
    a("s_load_dwordx2 s[6:7], s[0:1], 32")
    a("s_load_dwordx4 s[8:11], s[0:1], 64")
    a("s_load_dwordx2 s[12:13], s[0:1], 80")
    a("s_load_dwordx2 s[14:15], s[0:1], 96")
    a("v_lshrrev_b32 v1, 6, v0")
    a("v_and_b32 v2, 63, v0")
    a("v_readfirstlane_b32 s40, v1")
    a("v_lshrrev_b32 v3, 4, v2")
    a("v_and_b32 v4, 3, v2")
    a("s_lshl_b32 s41, s40, 14")
    a("v_and_b32 v7, 15, v2")
    a("v_lshrrev_b32 v7, 2, v7")
    a("v_lshl_add_u32 v7, v3, 3, v7")
    a("v_lshlrev_b32 v7, 5, v7")
    a("v_lshl_add_u32 v7, v4, 3, v7")
    a("v_add_u32 v7, s41, v7")
    a("v_lshrrev_b32 v5, 1, v2")
    a("v_lshlrev_b32 v5, 10, v5")
    a("v_and_b32 v6, 1, v2")
    a("v_lshl_add_u32 v5, v6, 4, v5")
    a("s_waitcnt lgkmcnt(0)")
    srd(a, 16, 4, 4096)
    srd(a, 20, 6, 4096*1024)
    srd(a, 24, 8, 1792*1024)
    srd(a, 28, 10, 1024)
    srd(a, 32, 12, 4096)
    srd(a, 36, 14, WS_SIZE)
    a("s_lshl_b32 s42, s2, 5")
    a("s_mul_i32 s43, s40, 224*1024")
    a("s_add_u32 s43, s43, s42")
    for i in range(7):
        a(f"s_add_u32 m0, s41, {i*1024}")
        a(f"s_add_u32 s44, s43, {i*32*1024}")
        a(f"buffer_load_dwordx4 v5, s[24:27], s44 offen lds")
    a("v_mul_u32_u24 v8, 3584, v4")
    a("v_lshl_add_u32 v8, v3, 4, v8")
    a("s_mul_i32 s44, s40, 448")
    a(f"s_add_u32 s44, s44, {HWS}")
    for j in range(7):
        a(f"buffer_load_dwordx4 v[{64+4*j}:{67+4*j}], v8, s[36:39], s44 offen offset:{j*64}")
    a("s_waitcnt vmcnt(0)")
    for j in range(7):
        a(f"ds_read_b64_tr_b16 v[{128+4*j}:{129+4*j}], v7 offset:{j*1024}")
        a(f"ds_read_b64_tr_b16 v[{130+4*j}:{131+4*j}], v7 offset:{j*1024+128}")
    a("s_waitcnt lgkmcnt(0)")
    for j in range(7):
        c = "0" if j == 0 else "v[20:23]"
        a(f"v_mfma_f32_16x16x32_bf16 v[20:23], v[{64+4*j}:{67+4*j}], v[{128+4*j}:{131+4*j}], {c}")
    a("s_nop 7")
    a("s_lshl_b32 s43, s40, 19")
    a("s_add_u32 s43, s43, s42")
    for i in range(16):
        a(f"s_add_u32 m0, s41, {i*1024}")
        a(f"s_add_u32 s44, s43, {i*32*1024}")
        a(f"buffer_load_dwordx4 v5, s[20:23], s44 offen lds")
    a("v_lshlrev_b32 v8, 13, v4")
    a("v_lshl_add_u32 v8, v3, 4, v8")
    a("s_lshl_b32 s44, s40, 10")
    a(f"s_add_u32 s44, s44, {OWS}")
    for j in range(16):
        a(f"buffer_load_dwordx4 v[{64+4*j}:{67+4*j}], v8, s[36:39], s44 offen offset:{j*64}")
    a("s_waitcnt vmcnt(0)")
    for j in range(16):
        a(f"ds_read_b64_tr_b16 v[{128+4*j}:{129+4*j}], v7 offset:{j*1024}")
        a(f"ds_read_b64_tr_b16 v[{130+4*j}:{131+4*j}], v7 offset:{j*1024+128}")
    a("s_waitcnt lgkmcnt(0)")
    for j in range(16):
        c = "0" if j == 0 else "v[16:19]"
        a(f"v_mfma_f32_16x16x32_bf16 v[16:19], v[{64+4*j}:{67+4*j}], v[{128+4*j}:{131+4*j}], {c}")
    a("s_nop 7"); a("s_nop 1")
    a("v_lshlrev_b32 v9, 2, v2")
    a("v_add_u32 v9, s41, v9")
    a("v_cmp_gt_u32 vcc, 16, v2")
    a("s_and_saveexec_b64 s[46:47], vcc")
    for r in range(4):
        a(f"ds_write_b32 v9, v{16+r} offset:{r*64}")
        a(f"ds_write_b32 v9, v{20+r} offset:{256+r*64}")
    a("s_mov_b64 exec, s[46:47]")
    a("s_waitcnt lgkmcnt(0)")
    a("s_barrier")
    a("s_cmp_lg_u32 s40, 0")
    a("s_cbranch_scc1 K3_END")
    a("v_lshlrev_b32 v9, 2, v2")
    a("v_add_u32 v8, 0x10000, v9")
    for w in range(8):
        a(f"ds_read_b32 v{16+w}, v{9 if w<4 else 8} offset:{(w&3)*16384}")
        a(f"ds_read_b32 v{24+w}, v{9 if w<4 else 8} offset:{(w&3)*16384+256}")
    a("v_lshlrev_b32 v10, 6, v2")
    a("v_and_b32 v11, 15, v2")
    a("v_lshlrev_b32 v11, 6, v11")
    for j in range(4):
        a(f"buffer_load_dwordx4 v[{64+4*j}:{67+4*j}], v10, s[16:19], 0 offen offset:{j*16}")
        a(f"buffer_load_dwordx4 v[{80+4*j}:{83+4*j}], v11, s[28:31], 0 offen offset:{j*16}")
    a("s_waitcnt lgkmcnt(0)")
    for w in range(1, 8):
        a(f"v_add_f32 v16, v16, v{16+w}")
        a(f"v_add_f32 v24, v24, v{24+w}")
    rbf(a, 16); rbf(a, 24)
    a("s_waitcnt vmcnt(0)")
    a("v_mov_b32 v12, 0")
    for k in range(16):
        a(f"v_lshlrev_b32 v13, 16, v{64+k}")
        a(f"v_lshlrev_b32 v14, 16, v{80+k}")
        a("v_mul_f32 v13, v13, v14")
        rbf(a, 13)
        a("v_add_f32 v12, v12, v13")
        a(f"v_and_b32 v13, 0xffff0000, v{64+k}")
        a(f"v_and_b32 v14, 0xffff0000, v{80+k}")
        a("v_mul_f32 v13, v13, v14")
        rbf(a, 13)
        a("v_add_f32 v12, v12, v13")
    for sh in (8, 4, 2, 1):
        a("s_nop 1")
        a(f"v_add_f32_dpp v12, v12, v12 row_ror:{sh} row_mask:0xf bank_mask:0xf")
    rbf(a, 12)
    sigmoid(a, 12, 13)
    rbf(a, 12)
    a("v_sub_f32 v13, 1.0, v12")
    rbf(a, 13)
    a("v_mul_f32 v16, v12, v16")
    rbf(a, 16)
    a("v_mul_f32 v24, v13, v24")
    rbf(a, 24)
    a("v_add_f32 v16, v16, v24")
    a("v_cvt_pk_bf16_f32 v16, v16, v16")
    a("v_lshlrev_b32 v10, 10, v3")
    a("v_and_b32 v11, 15, v2")
    a("v_lshl_add_u32 v10, v11, 1, v10")
    a("buffer_store_short v16, v10, s[32:35], s42 offen")
    a.lab("K3_END")
    a("s_endpgm")
    return a.txt(), kd(name, 192), name

def main(out, NT=" nt"):
    k1, d1, n1 = gen_k1()
    k2, d2, n2 = gen_k2(NT)
    k3, d3, n3 = gen_k3()
    s = f"""; generated by gen1.py
; @launch kernel={n1} grid=(368,1,1) block=(64,1,1) lds=32768
; @launch kernel={n2} grid=(256,1,1) block=(512,1,1) lds=131072
; @launch kernel={n3} grid=(32,1,1) block=(512,1,1) lds=131072
.amdgcn_target "amdgcn-amd-amdhsa--gfx950"
.text
"""
    s += k1 + k2 + k3
    s += '.section .rodata,"a"\n' + d1 + d2 + d3
    open(out, "w").write(s)
if __name__ == "__main__":
    main(sys.argv[1], "" if len(sys.argv) > 2 and sys.argv[2] == "nont" else " nt")
```

```python
import sys
PFX = "gated_mix__gqa_block_cached__glu_gated_glu__decode"
QWS, HWS, OWS, PWS = 0, 0x8000, 0xC000, 0x20000
WS_SIZE = 0x10000000
CSC = 0.08838834764831845 * 1.4426950408889634
import struct
def f2u(f): return struct.unpack("<I", struct.pack("<f", f))[0]

class A:
    def __init__(s): s.l = []
    def __call__(s, x):
        import re
        m = re.search(r"offset:(\d+)", x)
        if m:
            o = int(m.group(1))
            if x.startswith("buffer_"): assert o < 4096, x
            if x.startswith("ds_"): assert o < 65536, x
        s.l.append("  " + x)
    def lab(s, x): s.l.append(x + ":")
    def txt(s): return "\n".join(s.l) + "\n"

def srd(a, d, base, size):
    a(f"s_mov_b32 s{d}, s{base}")
    a(f"s_and_b32 s{d+1}, s{base+1}, 0xffff")
    a(f"s_mov_b32 s{d+2}, {size}")
    a(f"s_mov_b32 s{d+3}, 0x00020000")

def kd(name, vgpr, sgpr=96):
    acc = min(256, ((vgpr + 3)//4)*4)
    return f""".p2align 6
.amdhsa_kernel {name}
  .amdhsa_next_free_vgpr {vgpr}
  .amdhsa_next_free_sgpr {sgpr}
  .amdhsa_accum_offset {acc}
  .amdhsa_group_segment_fixed_size 0
  .amdhsa_kernarg_size 104
  .amdhsa_user_sgpr_count 2
  .amdhsa_user_sgpr_kernarg_segment_ptr 1
  .amdhsa_system_sgpr_workgroup_id_x 1
.end_amdhsa_kernel
"""
def kstart(a, name):
    a.l.append(f".globl {name}\n.p2align 8\n.type {name},@function\n{name}:")

def rbf(a, v):
    a(f"v_cvt_pk_bf16_f32 v{v}, v{v}, v{v}")
    a(f"v_lshlrev_b32 v{v}, 16, v{v}")

def sigmoid(a, v, t):
    a(f"v_mul_f32 v{t}, 0xbfb8aa3b, v{v}")
    a(f"v_exp_f32 v{t}, v{t}")
    a("s_nop 0")
    a(f"v_add_f32 v{t}, 1.0, v{t}")
    a(f"v_rcp_f32 v{v}, v{t}")
    a("s_nop 0")

def gen_k1():
    a = A(); name = PFX + "_k1_kernel"
    kstart(a, name)
    a("s_cmp_ge_u32 s2, 368")
    a("s_cbranch_scc1 K1_END")
    a("s_load_dwordx2 s[4:5], s[0:1], 0")
    a("s_load_dwordx2 s[6:7], s[0:1], 24")
    a("s_load_dwordx4 s[8:11], s[0:1], 48")
    a("s_load_dwordx2 s[12:13], s[0:1], 96")
    a("v_lshrrev_b32 v2, 4, v0")
    a("v_and_b32 v3, 3, v0")
    a("v_lshlrev_b32 v4, 10, v3")
    a("v_lshl_add_u32 v4, v2, 4, v4")
    a("v_and_b32 v7, 15, v0")
    a("v_lshrrev_b32 v7, 2, v7")
    a("v_lshl_add_u32 v7, v2, 3, v7")
    a("v_lshlrev_b32 v7, 5, v7")
    a("v_lshl_add_u32 v7, v3, 3, v7")
    a("v_lshrrev_b32 v5, 1, v0")
    a("v_and_b32 v6, 1, v0")
    a("v_and_b32 v8, 15, v0")
    a("s_waitcnt lgkmcnt(0)")
    srd(a, 16, 4, 4096)
    srd(a, 28, 12, WS_SIZE)
    for j in range(16):
        a(f"buffer_load_dwordx4 v[{64+4*j}:{67+4*j}], v4, s[16:19], 0 offen offset:{j*64}")
    a("s_cmp_ge_u32 s2, 256")
    a("s_cbranch_scc1 K1_H")
    srd(a, 20, 6, 512*8192)
    a("v_mul_u32_u24 v5, 8192, v5")
    a("v_lshl_add_u32 v5, v6, 4, v5")
    a("s_lshl_b32 s32, s2, 5")
    for i in range(16):
        a(f"s_mov_b32 m0, {i*1024}")
        a(f"s_add_u32 s33, s32, {i*32*8192}")
        a(f"buffer_load_dwordx4 v5, s[20:23], s33 offen lds")
    a("s_waitcnt vmcnt(0)")
    for j in range(16):
        a(f"ds_read_b64_tr_b16 v[{128+4*j}:{129+4*j}], v7 offset:{j*1024}")
        a(f"ds_read_b64_tr_b16 v[{130+4*j}:{131+4*j}], v7 offset:{j*1024+128}")
    a("s_waitcnt lgkmcnt(0)")
    for j in range(16):
        c = "0" if j == 0 else "v[16:19]"
        a(f"v_mfma_f32_16x16x32_bf16 v[16:19], v[{64+4*j}:{67+4*j}], v[{128+4*j}:{131+4*j}], {c}")
    a("s_nop 7"); a("s_nop 1")
    a("v_cvt_pk_bf16_f32 v20, v16, v17")
    a("v_cvt_pk_bf16_f32 v21, v18, v19")
    a("v_lshlrev_b32 v9, 1, v8")
    a("v_add_u32 v9, s32, v9")
    a("v_cmp_gt_u32 vcc, 16, v0")
    a("s_and_saveexec_b64 s[34:35], vcc")
    a(f"buffer_store_short v20, v9, s[28:31], 0 offen offset:{QWS}")
    a(f"s_movk_i32 s36, 0x2000")
    a(f"buffer_store_short_d16_hi v20, v9, s[28:31], s36 offen offset:{QWS}")
    a(f"s_movk_i32 s36, 0x4000")
    a(f"buffer_store_short v21, v9, s[28:31], s36 offen offset:{QWS}")
    a(f"s_movk_i32 s36, 0x6000")
    a(f"buffer_store_short_d16_hi v21, v9, s[28:31], s36 offen offset:{QWS}")
    a("s_endpgm")
    a.lab("K1_H")
    srd(a, 20, 8, 512*3584)
    srd(a, 24, 10, 512*3584)
    a("v_mul_u32_u24 v5, 3584, v5")
    a("v_lshl_add_u32 v5, v6, 4, v5")
    a("s_sub_u32 s32, s2, 256")
    a("s_lshl_b32 s32, s32, 5")
    for m in range(2):
        for i in range(16):
            a(f"s_mov_b32 m0, {m*16384+i*1024}")
            a(f"s_add_u32 s33, s32, {i*32*3584}")
            a(f"buffer_load_dwordx4 v5, s[{20+4*m}:{23+4*m}], s33 offen lds")
    a("s_waitcnt vmcnt(0)")
    for m in range(2):
        for j in range(16):
            a(f"ds_read_b64_tr_b16 v[{128+4*j}:{129+4*j}], v7 offset:{m*16384+j*1024}")
            a(f"ds_read_b64_tr_b16 v[{130+4*j}:{131+4*j}], v7 offset:{m*16384+j*1024+128}")
        a("s_waitcnt lgkmcnt(0)")
        d = 16 + 4*m
        for j in range(16):
            c = "0" if j == 0 else f"v[{d}:{d+3}]"
            a(f"v_mfma_f32_16x16x32_bf16 v[{d}:{d+3}], v[{64+4*j}:{67+4*j}], v[{128+4*j}:{131+4*j}], {c}")
        a("s_nop 7"); a("s_nop 1")
    for r in range(4):
        rbf(a, 16+r); rbf(a, 20+r)
        sigmoid(a, 16+r, 24)
        rbf(a, 16+r)
        a(f"v_mul_f32 v{16+r}, v{16+r}, v{20+r}")
    a("v_cvt_pk_bf16_f32 v20, v16, v17")
    a("v_cvt_pk_bf16_f32 v21, v18, v19")
    a("v_lshlrev_b32 v9, 1, v8")
    a("v_add_u32 v9, s32, v9")
    a("v_cmp_gt_u32 vcc, 16, v0")
    a("s_and_saveexec_b64 s[34:35], vcc")
    a(f"s_mov_b32 s36, {HWS}")
    a(f"buffer_store_short v20, v9, s[28:31], s36 offen")
    a(f"s_mov_b32 s36, {HWS+3584}")
    a(f"buffer_store_short_d16_hi v20, v9, s[28:31], s36 offen")
    a(f"s_mov_b32 s36, {HWS+2*3584}")
    a(f"buffer_store_short v21, v9, s[28:31], s36 offen")
    a(f"s_mov_b32 s36, {HWS+3*3584}")
    a(f"buffer_store_short_d16_hi v21, v9, s[28:31], s36 offen")
    a.lab("K1_END")
    a("s_endpgm")
    return a.txt(), kd(name, 192), name

def gen_k2(NT=" nt"):
    a = A(); name = PFX + "_k2_kernel"
    kstart(a, name)
    a("s_cmp_ge_u32 s2, 256")
    a("s_cbranch_scc1 K2_END")
    a("s_load_dwordx4 s[4:7], s[0:1], 8")
    a("s_load_dwordx4 s[8:11], s[0:1], 88")
    a("v_lshrrev_b32 v1, 6, v0")
    a("v_and_b32 v2, 63, v0")
    a("v_readfirstlane_b32 s20, v1")
    a("v_lshrrev_b32 v3, 4, v2")
    a("v_and_b32 v4, 15, v2")
    a("s_lshl_b32 s21, s2, 18")
    a("s_lshl_b32 s22, s20, 15")
    a("s_add_u32 s21, s21, s22")
    a("s_lshl_b32 s23, s20, 14")
    a("v_lshlrev_b32 v5, 8, v4")
    a("v_lshl_add_u32 v5, v3, 4, v5")
    a("v_lshlrev_b32 v6, 1, v3")
    a("v_xor_b32 v7, v4, v6")
    a("v_lshlrev_b32 v7, 4, v7")
    a("v_lshl_add_u32 v7, v3, 8, v7")
    a("v_xor_b32 v8, 0x80, v7")
    a("s_waitcnt lgkmcnt(0)")
    srd(a, 12, 4, 0x4000000)
    srd(a, 16, 6, 0x4000000)
    srd(a, 24, 10, WS_SIZE)
    srd(a, 28, 8, 256)
    a("s_lshr_b32 s32, s2, 6")
    a("s_lshl_b32 s32, s32, 13")
    a("s_lshr_b32 s33, s2, 3")
    a("s_and_b32 s33, s33, 7")
    a("s_lshl_b32 s33, s33, 10")
    a("s_add_u32 s32, s32, s33")
    a("v_and_b32 v9, 3, v2")
    a("v_lshlrev_b32 v9, 8, v9")
    a("v_lshl_add_u32 v9, v3, 4, v9")
    for j in range(4):
        a(f"buffer_load_dwordx4 v[{16+4*j}:{19+4*j}], v9, s[24:27], s32 offen offset:{QWS+j*64}")
    KB = 64
    def issue_k(r):
        for T in range(4):
            a(f"s_add_u32 s34, s21, {r*16384+T*4096}")
            for j in range(4):
                q = KB + (T*4+j)*4
                a(f"buffer_load_dwordx4 v[{q}:{q+3}], v5, s[12:15], s34 offen offset:{j*64}{NT}")
    def issue_v(r):
        for i in range(16):
            a(f"s_add_u32 m0, s23, {i*1024}")
            a(f"s_add_u32 s34, s21, {r*16384+i*1024}")
            a(f"buffer_load_dwordx4 v{7+(i&1)}, s[16:19], s34 offen{NT} lds")
    issue_k(0); issue_v(0)
    a("v_lshrrev_b32 v10, 2, v4")
    a("v_and_b32 v11, 3, v4")
    a("v_lshl_add_u32 v12, v3, 2, v10")
    a("v_and_b32 v13, 7, v12")
    a("v_lshlrev_b32 v12, 8, v12")
    a("v_lshl_add_u32 v12, v11, 3, v12")
    a("v_add_u32 v12, s23, v12")
    for t in range(8):
        a(f"v_xor_b32 v14, {t}, v13")
        a(f"v_lshl_add_u32 v{40+t}, v14, 5, v12")
    a(f"s_mov_b32 s40, {f2u(CSC)}")
    S = 48
    O = 128
    P = 32
    VF = 160
    M, L, T0, T1, AL = 10, 11, 12, 13, 14
    for r in range(2):
        a("s_waitcnt vmcnt(16)")
        for T in range(4):
            for j in range(4):
                q = KB + (T*4+j)*4
                c = "0" if j == 0 else f"v[{S+4*T}:{S+4*T+3}]"
                a(f"v_mfma_f32_16x16x32_bf16 v[{S+4*T}:{S+4*T+3}], v[{q}:{q+3}], v[{16+4*j}:{19+4*j}], {c}")
        if r == 0:
            a("s_nop 7")
            issue_k(1)
        a("s_nop 7"); a("s_nop 1")
        a(f"v_max3_f32 v{T0}, v{S}, v{S+1}, v{S+2}")
        for k in range(3, 15, 2):
            a(f"v_max3_f32 v{T0}, v{T0}, v{S+k}, v{S+k+1}")
        a(f"v_max_f32 v{T0}, v{T0}, v{S+15}")
        a(f"v_mov_b32 v{T1}, v{T0}")
        a("s_nop 1")
        a(f"v_permlane32_swap_b32 v{T0}, v{T1}")
        a("s_nop 1")
        a(f"v_max_f32 v{T0}, v{T0}, v{T1}")
        a(f"v_mov_b32 v{T1}, v{T0}")
        a("s_nop 1")
        a(f"v_permlane16_swap_b32 v{T0}, v{T1}")
        a("s_nop 1")
        a(f"v_max_f32 v{T0}, v{T0}, v{T1}")
        if r == 0:
            a(f"v_mov_b32 v{M}, v{T0}")
        else:
            a(f"v_max_f32 v{T0}, v{T0}, v{M}")
            a(f"v_sub_f32 v{AL}, v{M}, v{T0}")
            a(f"v_mul_f32 v{AL}, s40, v{AL}")
            a(f"v_exp_f32 v{AL}, v{AL}")
            a(f"v_mov_b32 v{M}, v{T0}")
        a(f"v_mul_f32 v{T0}, s40, v{M}")
        for k in range(16):
            a(f"v_fma_f32 v{S+k}, v{S+k}, s40, -v{T0}")
        for k in range(16):
            a(f"v_exp_f32 v{S+k}, v{S+k}")
        a("s_nop 0")
        if r == 0:
            a(f"v_add_f32 v{L}, v{S}, v{S+1}")
            ks = 2
        else:
            a(f"v_fma_f32 v{L}, v{L}, v{AL}, v{S}")
            ks = 1
            for k in range(32):
                a(f"v_mul_f32 v{O+k}, v{O+k}, v{AL}")
        for k in range(ks, 16):
            a(f"v_add_f32 v{L}, v{L}, v{S+k}")
        for k in range(8):
            a(f"v_cvt_pk_bf16_f32 v{P+k}, v{S+2*k}, v{S+2*k+1}")
        a("s_waitcnt vmcnt(16)" if r == 0 else "s_waitcnt vmcnt(0)")
        for u in range(2):
            for t in range(8):
                a(f"ds_read_b64_tr_b16 v[{VF+4*t}:{VF+4*t+1}], v{40+t} offset:{u*8192}")
                a(f"ds_read_b64_tr_b16 v[{VF+4*t+2}:{VF+4*t+3}], v{40+t} offset:{u*8192+4096}")
            for t in range(8):
                a(f"s_waitcnt lgkmcnt({14-2*t})")
                c = "0" if (r == 0 and u == 0) else f"v[{O+4*t}:{O+4*t+3}]"
                a(f"v_mfma_f32_16x16x32_bf16 v[{O+4*t}:{O+4*t+3}], v[{VF+4*t}:{VF+4*t+3}], v[{P+4*u}:{P+4*u+3}], {c}")
            a("s_nop 7")
        if r == 0:
            issue_v(1)
    a(f"v_mov_b32 v{T1}, v{L}")
    a("s_nop 1")
    a(f"v_permlane32_swap_b32 v{L}, v{T1}")
    a("s_nop 1")
    a(f"v_add_f32 v{L}, v{L}, v{T1}")
    a(f"v_mov_b32 v{T1}, v{L}")
    a("s_nop 1")
    a(f"v_permlane16_swap_b32 v{L}, v{T1}")
    a("s_nop 1")
    a(f"v_add_f32 v{L}, v{L}, v{T1}")
    a("v_lshlrev_b32 v5, 9, v4")
    a("v_lshl_add_u32 v5, v3, 4, v5")
    a("v_add_u32 v5, s23, v5")
    a("v_lshlrev_b32 v6, 3, v4")
    a("v_add_u32 v6, s23, v6")
    a("v_cmp_gt_u32 vcc, 4, v4")
    a("s_and_saveexec_b64 s[36:37], vcc")
    for t in range(8):
        a(f"ds_write_b128 v5, v[{O+4*t}:{O+4*t+3}] offset:{t*64}")
    a(f"ds_write_b64 v6, v[{M}:{L}] offset:2048")
    a("s_mov_b64 exec, s[36:37]")
    a("s_waitcnt lgkmcnt(0)")
    a("s_barrier")
    a("v_lshrrev_b32 v5, 7, v0")
    a("v_lshlrev_b32 v5, 3, v5")
    a("v_lshlrev_b32 v6, 2, v0")
    a("v_add_u32 v7, 0x10000, v5")
    a("v_add_u32 v8, 0x10000, v6")
    for w in range(8):
        a(f"ds_read_b64 v[{16+2*w}:{17+2*w}], v{5 if w<4 else 7} offset:{(w&3)*16384+2048}")
        a(f"ds_read_b32 v{32+w}, v{6 if w<4 else 8} offset:{(w&3)*16384}")
    a("s_waitcnt lgkmcnt(0)")
    def merge(nm):
        a("v_max3_f32 v10, v16, v18, v20")
        a("v_max3_f32 v10, v10, v22, v24")
        a("v_max3_f32 v10, v10, v26, v28")
        a("v_max_f32 v10, v10, v30")
        for w in range(8):
            a(f"v_sub_f32 v{16+2*w}, v{16+2*w}, v10")
            a(f"v_mul_f32 v{16+2*w}, s40, v{16+2*w}")
            a(f"v_exp_f32 v{16+2*w}, v{16+2*w}")
        a("s_nop 0")
        a("v_mul_f32 v11, v16, v17")
        a("v_mul_f32 v12, v16, v32")
        for w in range(1, 8):
            a(f"v_fma_f32 v11, v{16+2*w}, v{17+2*w}, v11")
            a(f"v_fma_f32 v12, v{16+2*w}, v{32+w}, v12")
    merge(0)
    a("s_lshl_b32 s34, s2, 12")
    a(f"s_add_u32 s34, s34, {PWS}")
    a("buffer_store_dword v12, v6, s[24:27], s34 offen sc1")
    a("v_and_b32 v7, 127, v0")
    a("v_cmp_eq_u32 vcc, 0, v7")
    a("s_and_saveexec_b64 s[36:37], vcc")
    a("buffer_store_dwordx2 v[10:11], v5, s[24:27], s34 offen offset:2048 sc1")
    a("s_mov_b64 exec, s[36:37]")
    a("s_waitcnt vmcnt(0)")
    a("s_barrier")
    a("s_cmp_lg_u32 s20, 0")
    a("s_cbranch_scc1 K2_SKIP")
    a("s_lshr_b32 s35, s2, 3")
    a("s_lshl_b32 s35, s35, 2")
    a("v_mov_b32 v8, 1")
    a("v_mov_b32 v9, 0")
    a("v_cmp_eq_u32 vcc, 0, v0")
    a("s_and_saveexec_b64 s[36:37], vcc")
    a("buffer_atomic_add v8, v9, s[28:31], s35 offen sc0 sc1")
    a("s_waitcnt vmcnt(0)")
    a("ds_write_b32 v9, v8 offset:4096")
    a("s_waitcnt lgkmcnt(0)")
    a("s_mov_b64 exec, s[36:37]")
    a.lab("K2_SKIP")
    a("s_barrier")
    a("v_mov_b32 v9, 0")
    a("ds_read_b32 v8, v9 offset:4096")
    a("s_waitcnt lgkmcnt(0)")
    a("v_readfirstlane_b32 s35, v8")
    a("s_cmp_lg_u32 s35, 7")
    a("s_cbranch_scc1 K2_END")
    a("s_and_b32 s34, s2, 0xf8")
    a("s_lshl_b32 s34, s34, 12")
    a(f"s_add_u32 s34, s34, {PWS}")
    for w in range(8):
        a(f"s_add_u32 s35, s34, {w*4096}")
        a(f"buffer_load_dwordx2 v[{16+2*w}:{17+2*w}], v5, s[24:27], s35 offen offset:2048 sc1")
        a(f"buffer_load_dword v{32+w}, v6, s[24:27], s35 offen sc1")
    a("s_waitcnt vmcnt(0)")
    merge(1)
    a("v_rcp_f32 v11, v11")
    a("s_nop 0")
    a("v_mul_f32 v12, v12, v11")
    a("v_cvt_pk_bf16_f32 v12, v12, v12")
    a("v_lshlrev_b32 v6, 1, v0")
    a(f"s_add_u32 s32, s32, {OWS}")
    a("buffer_store_short v12, v6, s[24:27], s32 offen")
    a.lab("K2_END")
    a("s_endpgm")
    return a.txt(), kd(name, 192), name

def gen_k3():
    a = A(); name = PFX + "_k3_kernel"
    kstart(a, name)
    a("s_cmp_ge_u32 s2, 32")
    a("s_cbranch_scc1 K3_END")
    a("s_load_dwordx2 s[4:5], s[0:1], 0")
    a("s_load_dwordx2 s[6:7], s[0:1], 32")
    a("s_load_dwordx4 s[8:11], s[0:1], 64")
    a("s_load_dwordx2 s[12:13], s[0:1], 80")
    a("s_load_dwordx2 s[14:15], s[0:1], 96")
    a("v_lshrrev_b32 v1, 6, v0")
    a("v_and_b32 v2, 63, v0")
    a("v_readfirstlane_b32 s40, v1")
    a("v_lshrrev_b32 v3, 4, v2")
    a("v_and_b32 v4, 3, v2")
    a("s_lshl_b32 s41, s40, 14")
    a("v_and_b32 v7, 15, v2")
    a("v_lshrrev_b32 v7, 2, v7")
    a("v_lshl_add_u32 v7, v3, 3, v7")
    a("v_lshlrev_b32 v7, 5, v7")
    a("v_lshl_add_u32 v7, v4, 3, v7")
    a("v_add_u32 v7, s41, v7")
    a("v_lshrrev_b32 v5, 1, v2")
    a("v_lshlrev_b32 v5, 10, v5")
    a("v_and_b32 v6, 1, v2")
    a("v_lshl_add_u32 v5, v6, 4, v5")
    a("s_waitcnt lgkmcnt(0)")
    srd(a, 16, 4, 4096)
    srd(a, 20, 6, 4096*1024)
    srd(a, 24, 8, 1792*1024)
    srd(a, 28, 10, 1024)
    srd(a, 32, 12, 4096)
    srd(a, 36, 14, WS_SIZE)
    a("s_lshl_b32 s42, s2, 5")
    a("s_mul_i32 s43, s40, 224*1024")
    a("s_add_u32 s43, s43, s42")
    for i in range(7):
        a(f"s_add_u32 m0, s41, {i*1024}")
        a(f"s_add_u32 s44, s43, {i*32*1024}")
        a(f"buffer_load_dwordx4 v5, s[24:27], s44 offen lds")
    a("v_mul_u32_u24 v8, 3584, v4")
    a("v_lshl_add_u32 v8, v3, 4, v8")
    a("s_mul_i32 s44, s40, 448")
    a(f"s_add_u32 s44, s44, {HWS}")
    for j in range(7):
        a(f"buffer_load_dwordx4 v[{64+4*j}:{67+4*j}], v8, s[36:39], s44 offen offset:{j*64}")
    a("s_waitcnt vmcnt(0)")
    for j in range(7):
        a(f"ds_read_b64_tr_b16 v[{128+4*j}:{129+4*j}], v7 offset:{j*1024}")
        a(f"ds_read_b64_tr_b16 v[{130+4*j}:{131+4*j}], v7 offset:{j*1024+128}")
    a("s_waitcnt lgkmcnt(0)")
    for j in range(7):
        c = "0" if j == 0 else "v[20:23]"
        a(f"v_mfma_f32_16x16x32_bf16 v[20:23], v[{64+4*j}:{67+4*j}], v[{128+4*j}:{131+4*j}], {c}")
    a("s_nop 7")
    a("s_lshl_b32 s43, s40, 19")
    a("s_add_u32 s43, s43, s42")
    for i in range(16):
        a(f"s_add_u32 m0, s41, {i*1024}")
        a(f"s_add_u32 s44, s43, {i*32*1024}")
        a(f"buffer_load_dwordx4 v5, s[20:23], s44 offen lds")
    a("v_lshlrev_b32 v8, 13, v4")
    a("v_lshl_add_u32 v8, v3, 4, v8")
    a("s_lshl_b32 s44, s40, 10")
    a(f"s_add_u32 s44, s44, {OWS}")
    for j in range(16):
        a(f"buffer_load_dwordx4 v[{64+4*j}:{67+4*j}], v8, s[36:39], s44 offen offset:{j*64}")
    a("s_waitcnt vmcnt(0)")
    for j in range(16):
        a(f"ds_read_b64_tr_b16 v[{128+4*j}:{129+4*j}], v7 offset:{j*1024}")
        a(f"ds_read_b64_tr_b16 v[{130+4*j}:{131+4*j}], v7 offset:{j*1024+128}")
    a("s_waitcnt lgkmcnt(0)")
    for j in range(16):
        c = "0" if j == 0 else "v[16:19]"
        a(f"v_mfma_f32_16x16x32_bf16 v[16:19], v[{64+4*j}:{67+4*j}], v[{128+4*j}:{131+4*j}], {c}")
    a("s_nop 7"); a("s_nop 1")
    a("v_lshlrev_b32 v9, 2, v2")
    a("v_add_u32 v9, s41, v9")
    a("v_cmp_gt_u32 vcc, 16, v2")
    a("s_and_saveexec_b64 s[46:47], vcc")
    for r in range(4):
        a(f"ds_write_b32 v9, v{16+r} offset:{r*64}")
        a(f"ds_write_b32 v9, v{20+r} offset:{256+r*64}")
    a("s_mov_b64 exec, s[46:47]")
    a("s_waitcnt lgkmcnt(0)")
    a("s_barrier")
    a("s_cmp_lg_u32 s40, 0")
    a("s_cbranch_scc1 K3_END")
    a("v_lshlrev_b32 v9, 2, v2")
    a("v_add_u32 v8, 0x10000, v9")
    for w in range(8):
        a(f"ds_read_b32 v{16+w}, v{9 if w<4 else 8} offset:{(w&3)*16384}")
        a(f"ds_read_b32 v{24+w}, v{9 if w<4 else 8} offset:{(w&3)*16384+256}")
    a("v_lshlrev_b32 v10, 6, v2")
    a("v_and_b32 v11, 15, v2")
    a("v_lshlrev_b32 v11, 6, v11")
    for j in range(4):
        a(f"buffer_load_dwordx4 v[{64+4*j}:{67+4*j}], v10, s[16:19], 0 offen offset:{j*16}")
        a(f"buffer_load_dwordx4 v[{80+4*j}:{83+4*j}], v11, s[28:31], 0 offen offset:{j*16}")
    a("s_waitcnt lgkmcnt(0)")
    for w in range(1, 8):
        a(f"v_add_f32 v16, v16, v{16+w}")
        a(f"v_add_f32 v24, v24, v{24+w}")
    rbf(a, 16); rbf(a, 24)
    a("s_waitcnt vmcnt(0)")
    a("v_mov_b32 v12, 0")
    for k in range(16):
        a(f"v_lshlrev_b32 v13, 16, v{64+k}")
        a(f"v_lshlrev_b32 v14, 16, v{80+k}")
        a("v_mul_f32 v13, v13, v14")
        rbf(a, 13)
        a("v_add_f32 v12, v12, v13")
        a(f"v_and_b32 v13, 0xffff0000, v{64+k}")
        a(f"v_and_b32 v14, 0xffff0000, v{80+k}")
        a("v_mul_f32 v13, v13, v14")
        rbf(a, 13)
        a("v_add_f32 v12, v12, v13")
    for sh in (8, 4, 2, 1):
        a("s_nop 1")
        a(f"v_add_f32_dpp v12, v12, v12 row_ror:{sh} row_mask:0xf bank_mask:0xf")
    rbf(a, 12)
    sigmoid(a, 12, 13)
    rbf(a, 12)
    a("v_sub_f32 v13, 1.0, v12")
    rbf(a, 13)
    a("v_mul_f32 v16, v12, v16")
    rbf(a, 16)
    a("v_mul_f32 v24, v13, v24")
    rbf(a, 24)
    a("v_add_f32 v16, v16, v24")
    a("v_cvt_pk_bf16_f32 v16, v16, v16")
    a("v_lshlrev_b32 v10, 10, v3")
    a("v_and_b32 v11, 15, v2")
    a("v_lshl_add_u32 v10, v11, 1, v10")
    a("buffer_store_short v16, v10, s[32:35], s42 offen")
    a.lab("K3_END")
    a("s_endpgm")
    return a.txt(), kd(name, 192), name

def main(out, NT=" nt"):
    k1, d1, n1 = gen_k1()
    k2, d2, n2 = gen_k2(NT)
    k3, d3, n3 = gen_k3()
    s = f"""; generated by gen1.py
; @launch kernel={n1} grid=(368,1,1) block=(64,1,1) lds=32768
; @launch kernel={n2} grid=(256,1,1) block=(512,1,1) lds=131072
; @launch kernel={n3} grid=(32,1,1) block=(512,1,1) lds=131072
.amdgcn_target "amdgcn-amd-amdhsa--gfx950"
.text
"""
    s += k1 + k2 + k3
    s += '.section .rodata,"a"\n' + d1 + d2 + d3
    open(out, "w").write(s)
if __name__ == "__main__":
    main(sys.argv[1], "" if len(sys.argv) > 2 and sys.argv[2] == "nont" else " nt")
```

```python
import sys, struct
from gen1 import A, srd, kd, kstart, rbf, sigmoid, f2u, PFX, QWS, HWS, PWS, WS_SIZE
import gen1
ACC, CNT = 0x14000, 0x18000
LOG2E = 1.4426950408889634
SCALE = 0.08838834764831845

def gen_k1():
    txt, d, name = gen1.gen_k1()
    a = A()
    a("s_cmp_ge_u32 s2, 68")
    a("s_cbranch_scc1 K1_NZ")
    a("s_lshl_b32 s32, s2, 8")
    a(f"s_add_u32 s32, s32, {ACC}")
    a("v_lshlrev_b32 v9, 2, v0")
    a("v_mov_b32 v10, 0")
    a("buffer_store_dword v10, v9, s[28:31], s32 offen")
    a.lab("K1_NZ")
    key = "  buffer_load_dwordx4 v[64:67], v4, s[16:19], 0 offen offset:0\n"
    assert key in txt
    txt = txt.replace(key, a.txt() + key)
    return txt, d, name

def gen_k2(NT=" nt"):
    a = A(); name = PFX + "_k2_kernel"
    kstart(a, name)
    a("s_cmp_ge_u32 s2, 256")
    a("s_cbranch_scc1 K2_END")
    a("s_load_dwordx4 s[4:7], s[0:1], 8")
    a("s_load_dwordx4 s[8:11], s[0:1], 88")
    a("v_lshrrev_b32 v1, 6, v0")
    a("v_and_b32 v2, 63, v0")
    a("v_readfirstlane_b32 s20, v1")
    a("v_lshrrev_b32 v3, 4, v2")
    a("v_and_b32 v4, 15, v2")
    a("s_lshl_b32 s21, s2, 18")
    a("s_lshl_b32 s22, s20, 15")
    a("s_add_u32 s21, s21, s22")
    a("s_lshl_b32 s23, s20, 14")
    a("v_lshlrev_b32 v5, 8, v4")
    a("v_lshl_add_u32 v5, v3, 4, v5")
    a("v_lshlrev_b32 v6, 1, v3")
    a("v_xor_b32 v7, v4, v6")
    a("v_lshlrev_b32 v7, 4, v7")
    a("v_lshl_add_u32 v7, v3, 8, v7")
    a("v_xor_b32 v8, 0x80, v7")
    a("s_waitcnt lgkmcnt(0)")
    srd(a, 12, 4, 0x4000000)
    srd(a, 16, 6, 0x4000000)
    srd(a, 24, 10, WS_SIZE)
    a("s_lshr_b32 s32, s2, 6")
    a("s_lshl_b32 s32, s32, 13")
    a("s_lshr_b32 s33, s2, 3")
    a("s_and_b32 s33, s33, 7")
    a("s_lshl_b32 s33, s33, 10")
    a("s_add_u32 s32, s32, s33")
    a("v_and_b32 v9, 3, v2")
    a("v_lshlrev_b32 v9, 8, v9")
    a("v_lshl_add_u32 v9, v3, 4, v9")
    for j in range(4):
        a(f"buffer_load_dwordx4 v[{16+4*j}:{19+4*j}], v9, s[24:27], s32 offen offset:{QWS+j*64}")
    KB = 64
    def issue_k(r):
        for T in range(4):
            a(f"s_add_u32 s34, s21, {r*16384+T*4096}")
            for j in range(4):
                q = KB + (T*4+j)*4
                a(f"buffer_load_dwordx4 v[{q}:{q+3}], v5, s[12:15], s34 offen offset:{j*64}{NT}")
    def issue_v(r):
        for i in range(16):
            a(f"s_add_u32 m0, s23, {i*1024}")
            a(f"s_add_u32 s34, s21, {r*16384+i*1024}")
            a(f"buffer_load_dwordx4 v{7+(i&1)}, s[16:19], s34 offen{NT} lds")
    issue_k(0); issue_v(0)
    a("v_lshrrev_b32 v10, 2, v4")
    a("v_and_b32 v11, 3, v4")
    a("v_lshl_add_u32 v12, v3, 2, v10")
    a("v_and_b32 v13, 7, v12")
    a("v_lshlrev_b32 v12, 8, v12")
    a("v_lshl_add_u32 v12, v11, 3, v12")
    a("v_add_u32 v12, s23, v12")
    for t in range(8):
        a(f"v_xor_b32 v14, {t}, v13")
        a(f"v_lshl_add_u32 v{40+t}, v14, 5, v12")
    a(f"s_mov_b32 s40, {f2u(LOG2E)}")
    a(f"s_mov_b32 s41, {f2u(SCALE)}")
    a(f"s_mov_b32 s42, 0xffff0000")
    S = 48; O = 128; P = 32; VF = 160
    M, L, T0, T1, AL = 10, 11, 12, 13, 14
    for r in range(2):
        a("s_waitcnt vmcnt(16)")
        for T in range(4):
            for j in range(4):
                q = KB + (T*4+j)*4
                c = "0" if j == 0 else f"v[{S+4*T}:{S+4*T+3}]"
                a(f"v_mfma_f32_16x16x32_bf16 v[{S+4*T}:{S+4*T+3}], v[{q}:{q+3}], v[{16+4*j}:{19+4*j}], {c}")
        if r == 0:
            a("s_nop 7")
            issue_k(1)
        a("s_nop 7"); a("s_nop 1")
        for k in range(0, 16, 2):
            a(f"v_cvt_pk_bf16_f32 v{T0}, v{S+k}, v{S+k+1}")
            a(f"v_lshlrev_b32 v{S+k}, 16, v{T0}")
            a(f"v_and_b32 v{S+k+1}, s42, v{T0}")
            a(f"v_mul_f32 v{S+k}, s41, v{S+k}")
            a(f"v_mul_f32 v{S+k+1}, s41, v{S+k+1}")
            a(f"v_cvt_pk_bf16_f32 v{T0}, v{S+k}, v{S+k+1}")
            a(f"v_lshlrev_b32 v{S+k}, 16, v{T0}")
            a(f"v_and_b32 v{S+k+1}, s42, v{T0}")
        a(f"v_max3_f32 v{T0}, v{S}, v{S+1}, v{S+2}")
        for k in range(3, 15, 2):
            a(f"v_max3_f32 v{T0}, v{T0}, v{S+k}, v{S+k+1}")
        a(f"v_max_f32 v{T0}, v{T0}, v{S+15}")
        a(f"v_mov_b32 v{T1}, v{T0}")
        a("s_nop 1")
        a(f"v_permlane32_swap_b32 v{T0}, v{T1}")
        a("s_nop 1")
        a(f"v_max_f32 v{T0}, v{T0}, v{T1}")
        a(f"v_mov_b32 v{T1}, v{T0}")
        a("s_nop 1")
        a(f"v_permlane16_swap_b32 v{T0}, v{T1}")
        a("s_nop 1")
        a(f"v_max_f32 v{T0}, v{T0}, v{T1}")
        if r == 0:
            a(f"v_mov_b32 v{M}, v{T0}")
        else:
            a(f"v_max_f32 v{T0}, v{T0}, v{M}")
            a(f"v_sub_f32 v{AL}, v{M}, v{T0}")
            a(f"v_mul_f32 v{AL}, s40, v{AL}")
            a(f"v_exp_f32 v{AL}, v{AL}")
            a(f"v_mov_b32 v{M}, v{T0}")
        for k in range(16):
            a(f"v_sub_f32 v{S+k}, v{S+k}, v{M}")
        for k in range(16):
            a(f"v_mul_f32 v{S+k}, s40, v{S+k}")
        for k in range(16):
            a(f"v_exp_f32 v{S+k}, v{S+k}")
        a("s_nop 0")
        if r == 0:
            a(f"v_add_f32 v{L}, v{S}, v{S+1}")
            ks = 2
        else:
            a(f"v_fma_f32 v{L}, v{L}, v{AL}, v{S}")
            ks = 1
            for k in range(32):
                a(f"v_mul_f32 v{O+k}, v{O+k}, v{AL}")
        for k in range(ks, 16):
            a(f"v_add_f32 v{L}, v{L}, v{S+k}")
        for k in range(8):
            a(f"v_cvt_pk_bf16_f32 v{P+k}, v{S+2*k}, v{S+2*k+1}")
        a("s_waitcnt vmcnt(16)" if r == 0 else "s_waitcnt vmcnt(0)")
        for u in range(2):
            for t in range(8):
                a(f"ds_read_b64_tr_b16 v[{VF+4*t}:{VF+4*t+1}], v{40+t} offset:{u*8192}")
                a(f"ds_read_b64_tr_b16 v[{VF+4*t+2}:{VF+4*t+3}], v{40+t} offset:{u*8192+4096}")
            for t in range(8):
                a(f"s_waitcnt lgkmcnt({14-2*t})")
                c = "0" if (r == 0 and u == 0) else f"v[{O+4*t}:{O+4*t+3}]"
                a(f"v_mfma_f32_16x16x32_bf16 v[{O+4*t}:{O+4*t+3}], v[{VF+4*t}:{VF+4*t+3}], v[{P+4*u}:{P+4*u+3}], {c}")
            a("s_nop 7")
        if r == 0:
            issue_v(1)
    a(f"v_mov_b32 v{T1}, v{L}")
    a("s_nop 1")
    a(f"v_permlane32_swap_b32 v{L}, v{T1}")
    a("s_nop 1")
    a(f"v_add_f32 v{L}, v{L}, v{T1}")
    a(f"v_mov_b32 v{T1}, v{L}")
    a("s_nop 1")
    a(f"v_permlane16_swap_b32 v{L}, v{T1}")
    a("s_nop 1")
    a(f"v_add_f32 v{L}, v{L}, v{T1}")
    a("v_lshlrev_b32 v5, 9, v4")
    a("v_lshl_add_u32 v5, v3, 4, v5")
    a("v_add_u32 v5, s23, v5")
    a("v_lshlrev_b32 v6, 3, v4")
    a("v_add_u32 v6, s23, v6")
    a("v_cmp_gt_u32 vcc, 4, v4")
    a("s_and_saveexec_b64 s[36:37], vcc")
    for t in range(8):
        a(f"ds_write_b128 v5, v[{O+4*t}:{O+4*t+3}] offset:{t*64}")
    a(f"ds_write_b64 v6, v[{M}:{L}] offset:2048")
    a("s_mov_b64 exec, s[36:37]")
    a("s_waitcnt lgkmcnt(0)")
    a("s_barrier")
    a("v_lshrrev_b32 v5, 7, v0")
    a("v_lshlrev_b32 v5, 3, v5")
    a("v_lshlrev_b32 v6, 2, v0")
    a("v_add_u32 v7, 0x10000, v5")
    a("v_add_u32 v8, 0x10000, v6")
    for w in range(8):
        a(f"ds_read_b64 v[{16+2*w}:{17+2*w}], v{5 if w<4 else 7} offset:{(w&3)*16384+2048}")
        a(f"ds_read_b32 v{32+w}, v{6 if w<4 else 8} offset:{(w&3)*16384}")
    a("s_waitcnt lgkmcnt(0)")
    merge(a)
    a("s_lshl_b32 s34, s2, 12")
    a(f"s_add_u32 s34, s34, {PWS}")
    a("buffer_store_dword v12, v6, s[24:27], s34 offen")
    a("v_and_b32 v7, 127, v0")
    a("v_cmp_eq_u32 vcc, 0, v7")
    a("s_and_saveexec_b64 s[36:37], vcc")
    a("buffer_store_dwordx2 v[10:11], v5, s[24:27], s34 offen offset:2048")
    a.lab("K2_END")
    a("s_endpgm")
    return a.txt(), kd(name, 192), name

def merge(a):
    a("v_max3_f32 v10, v16, v18, v20")
    a("v_max3_f32 v10, v10, v22, v24")
    a("v_max3_f32 v10, v10, v26, v28")
    a("v_max_f32 v10, v10, v30")
    for w in range(8):
        a(f"v_sub_f32 v{16+2*w}, v{16+2*w}, v10")
        a(f"v_mul_f32 v{16+2*w}, s40, v{16+2*w}")
        a(f"v_exp_f32 v{16+2*w}, v{16+2*w}")
    a("s_nop 0")
    a("v_mul_f32 v11, v16, v17")
    a("v_mul_f32 v12, v16, v32")
    for w in range(1, 8):
        a(f"v_fma_f32 v11, v{16+2*w}, v{17+2*w}, v11")
        a(f"v_fma_f32 v12, v{16+2*w}, v{32+w}, v12")

def gen_k3():
    WOL, AOP, DT, FL = 0, 16384, 17408, 18432
    a = A(); name = PFX + "_k3_kernel"
    kstart(a, name)
    a("s_cmp_ge_u32 s2, 368")
    a("s_cbranch_scc1 K3_END")
    a("s_load_dwordx2 s[4:5], s[0:1], 0")
    a("s_load_dwordx2 s[6:7], s[0:1], 32")
    a("s_load_dwordx4 s[8:11], s[0:1], 64")
    a("s_load_dwordx2 s[12:13], s[0:1], 80")
    a("s_load_dwordx2 s[14:15], s[0:1], 96")
    a("v_lshrrev_b32 v1, 6, v0")
    a("v_and_b32 v2, 63, v0")
    a("v_readfirstlane_b32 s44, v1")
    a("v_lshrrev_b32 v3, 4, v2")
    a("v_and_b32 v4, 3, v2")
    a(f"s_mov_b32 s40, {f2u(LOG2E)}")
    a("v_lshrrev_b32 v5, 3, v2")
    a("v_lshlrev_b32 v5, 10, v5")
    a("v_and_b32 v6, 7, v2")
    a("v_lshl_add_u32 v5, v6, 4, v5")
    a("s_waitcnt lgkmcnt(0)")
    srd(a, 16, 4, 4096)
    srd(a, 28, 10, 1024)
    srd(a, 32, 12, 4096)
    srd(a, 36, 14, WS_SIZE)
    a("s_cmp_ge_u32 s2, 256")
    a("s_cbranch_scc1 K3_DOWN")
    srd(a, 20, 6, 4096*1024)
    a("s_and_b32 s45, s2, 31")
    a("s_lshr_b32 s46, s2, 5")
    a("s_mov_b32 s47, 0")
    a("s_lshl_b32 s48, s45, 17")
    a("s_lshl_b32 s49, s46, 7")
    a("s_add_u32 s48, s48, s49")
    a("s_lshl_b32 s49, s44, 14")
    a("s_add_u32 s48, s48, s49")
    a("s_lshl_b32 s49, s44, 11")
    for i in range(2):
        a(f"s_add_u32 m0, s49, {WOL+i*1024}")
        a(f"s_add_u32 s50, s48, {i*8192}")
        a(f"buffer_load_dwordx4 v5, s[20:23], s50 offen nt lds")
    a("v_lshrrev_b32 v7, 7, v0")
    a("v_lshlrev_b32 v7, 18, v7")
    a("v_and_b32 v8, 127, v0")
    a("v_lshl_add_u32 v8, v8, 2, v7")
    a("s_lshr_b32 s50, s45, 2")
    a("s_lshl_b32 s50, s50, 15")
    a(f"s_add_u32 s50, s50, {PWS}")
    a("s_and_b32 s51, s45, 3")
    a("s_lshl_b32 s52, s51, 9")
    a("s_add_u32 s52, s52, s50")
    a("s_lshl_b32 s53, s51, 3")
    a("s_add_u32 s53, s53, s50")
    for s in range(8):
        a(f"s_add_u32 s54, s52, {s*4096}")
        a(f"s_add_u32 s55, s53, {s*4096}")
        a(f"buffer_load_dword v{32+s}, v8, s[36:39], s54 offen")
        a(f"buffer_load_dwordx2 v[{16+2*s}:{17+2*s}], v7, s[36:39], s55 offen offset:2048")
    a("s_waitcnt vmcnt(0)")
    merge(a)
    a("v_rcp_f32 v11, v11")
    a("s_nop 0")
    a("v_mul_f32 v12, v12, v11")
    a("v_cvt_pk_bf16_f32 v12, v12, v12")
    a("v_lshlrev_b32 v9, 1, v0")
    a(f"ds_write_b16 v9, v12 offset:{AOP}")
    a("s_waitcnt lgkmcnt(0)")
    a("s_barrier")
    a("s_cmp_ge_u32 s44, 4")
    a("s_cbranch_scc1 K3_JOIN")
    a("v_lshlrev_b32 v9, 8, v4")
    a("v_lshl_add_u32 v9, v3, 4, v9")
    for j in range(4):
        a(f"ds_read_b128 v[{64+4*j}:{67+4*j}], v9 offset:{AOP+j*64}")
    a("s_branch K3_MM")
    a.lab("K3_DOWN")
    srd(a, 20, 8, 1792*1024)
    a("s_sub_u32 s45, s2, 256")
    a("s_and_b32 s46, s45, 7")
    a("s_lshr_b32 s45, s45, 3")
    a("s_mov_b32 s47, 8192")
    a("s_lshl_b32 s48, s45, 17")
    a("s_lshl_b32 s49, s46, 7")
    a("s_add_u32 s48, s48, s49")
    a("s_lshl_b32 s49, s44, 14")
    a("s_add_u32 s48, s48, s49")
    a("s_lshl_b32 s49, s44, 11")
    for i in range(2):
        a(f"s_add_u32 m0, s49, {WOL+i*1024}")
        a(f"s_add_u32 s50, s48, {i*8192}")
        a(f"buffer_load_dwordx4 v5, s[20:23], s50 offen nt lds")
    a("v_mul_u32_u24 v9, 3584, v4")
    a("v_lshl_add_u32 v9, v3, 4, v9")
    a("s_lshl_b32 s50, s45, 8")
    a(f"s_add_u32 s50, s50, {HWS}")
    for j in range(4):
        a(f"buffer_load_dwordx4 v[{64+4*j}:{67+4*j}], v9, s[36:39], s50 offen offset:{j*64}")
    a("s_waitcnt vmcnt(0)")
    a("s_barrier")
    a("s_cmp_ge_u32 s44, 4")
    a("s_cbranch_scc1 K3_JOIN")
    a.lab("K3_MM")
    a("v_and_b32 v7, 15, v2")
    a("v_lshrrev_b32 v7, 2, v7")
    a("v_lshl_add_u32 v7, v3, 3, v7")
    a("v_lshlrev_b32 v7, 7, v7")
    a("v_lshl_add_u32 v7, v4, 3, v7")
    a("s_lshl_b32 s50, s44, 5")
    a("v_add_u32 v7, s50, v7")
    for j in range(4):
        a(f"ds_read_b64_tr_b16 v[{80+4*j}:{81+4*j}], v7 offset:{WOL+j*4096}")
        a(f"ds_read_b64_tr_b16 v[{82+4*j}:{83+4*j}], v7 offset:{WOL+j*4096+512}")
    a("s_waitcnt lgkmcnt(0)")
    for j in range(4):
        c = "0" if j == 0 else "v[16:19]"
        a(f"v_mfma_f32_16x16x32_bf16 v[16:19], v[{64+4*j}:{67+4*j}], v[{80+4*j}:{83+4*j}], {c}")
    a("s_nop 7"); a("s_nop 1")
    a("v_lshlrev_b32 v9, 2, v2")
    a("s_lshl_b32 s50, s44, 6")
    a("v_add_u32 v9, s50, v9")
    a("v_cmp_gt_u32 vcc, 16, v2")
    a("s_and_saveexec_b64 s[56:57], vcc")
    for r in range(4):
        a(f"ds_write_b32 v9, v{16+r} offset:{DT+r*256}")
    a("s_mov_b64 exec, s[56:57]")
    a("s_waitcnt lgkmcnt(0)")
    a.lab("K3_JOIN")
    a("s_barrier")
    a("s_cmp_lg_u32 s44, 0")
    a("s_cbranch_scc1 K3_W")
    a("v_lshlrev_b32 v9, 2, v2")
    for r in range(4):
        a(f"ds_read_b32 v{16+r}, v9 offset:{DT+r*256}")
    a("s_lshl_b32 s50, s46, 8")
    a("s_add_u32 s50, s50, s47")
    a(f"s_add_u32 s50, s50, {ACC}")
    a("s_waitcnt lgkmcnt(0)")
    a("s_add_u32 s51, s50, 4096")
    for r in range(4):
        a(f"buffer_atomic_add_f32 v{16+r}, v9, s[36:39], s{50+(r>>1)} offen offset:{(r&1)*2048}")
    a("s_waitcnt vmcnt(0)")
    a("s_lshl_b32 s50, s46, 7")
    a(f"s_add_u32 s50, s50, {CNT}")
    a("v_mov_b32 v8, 1")
    a("v_mov_b32 v9, 0")
    a("v_cmp_eq_u32 vcc, 0, v2")
    a("s_and_saveexec_b64 s[56:57], vcc")
    a("buffer_atomic_add v8, v9, s[36:39], s50 offen sc0 sc1")
    a("s_waitcnt vmcnt(0)")
    a(f"ds_write_b32 v9, v8 offset:{FL}")
    a("s_waitcnt lgkmcnt(0)")
    a("s_mov_b64 exec, s[56:57]")
    a.lab("K3_W")
    a("s_barrier")
    a("v_mov_b32 v9, 0")
    a(f"ds_read_b32 v8, v9 offset:{FL}")
    a("s_waitcnt lgkmcnt(0)")
    a("v_readfirstlane_b32 s50, v8")
    a("s_cmp_lg_u32 s50, 45")
    a("s_cbranch_scc1 K3_END")
    a("s_cmp_ge_u32 s44, 4")
    a("s_cbranch_scc1 K3_END")
    a("v_lshlrev_b32 v9, 2, v2")
    a("s_lshl_b32 s50, s46, 8")
    a("s_lshl_b32 s51, s44, 11")
    a("s_add_u32 s50, s50, s51")
    a(f"s_add_u32 s50, s50, {ACC}")
    a("s_add_u32 s51, s50, 8192")
    a("buffer_load_dword v16, v9, s[36:39], s50 offen sc1")
    a("buffer_load_dword v24, v9, s[36:39], s51 offen sc1")
    a("v_lshlrev_b32 v10, 4, v2")
    a("s_lshl_b32 s51, s44, 10")
    a("buffer_load_dwordx4 v[64:67], v10, s[16:19], s51 offen")
    a("buffer_load_dwordx4 v[80:83], v10, s[28:31], 0 offen")
    a("s_waitcnt vmcnt(0)")
    a("v_mov_b32 v12, 0")
    for k in range(4):
        a(f"v_lshlrev_b32 v13, 16, v{64+k}")
        a(f"v_lshlrev_b32 v14, 16, v{80+k}")
        a("v_mul_f32 v13, v13, v14")
        rbf(a, 13)
        a("v_add_f32 v12, v12, v13")
        a(f"v_and_b32 v13, 0xffff0000, v{64+k}")
        a(f"v_and_b32 v14, 0xffff0000, v{80+k}")
        a("v_mul_f32 v13, v13, v14")
        rbf(a, 13)
        a("v_add_f32 v12, v12, v13")
    for sh in (8, 4, 2, 1):
        a("s_nop 1")
        a(f"v_add_f32_dpp v12, v12, v12 row_ror:{sh} row_mask:0xf bank_mask:0xf")
    a("v_mov_b32 v13, v12")
    a("s_nop 1")
    a("v_permlane32_swap_b32 v12, v13")
    a("s_nop 1")
    a("v_add_f32 v12, v12, v13")
    a("v_mov_b32 v13, v12")
    a("s_nop 1")
    a("v_permlane16_swap_b32 v12, v13")
    a("s_nop 1")
    a("v_add_f32 v12, v12, v13")
    rbf(a, 12)
    sigmoid(a, 12, 13)
    rbf(a, 12)
    rbf(a, 16); rbf(a, 24)
    a("v_sub_f32 v13, 1.0, v12")
    rbf(a, 13)
    a("v_mul_f32 v16, v12, v16")
    rbf(a, 16)
    a("v_mul_f32 v24, v13, v24")
    rbf(a, 24)
    a("v_add_f32 v16, v16, v24")
    a("v_cvt_pk_bf16_f32 v16, v16, v16")
    a("v_lshlrev_b32 v10, 1, v2")
    a("s_lshl_b32 s50, s46, 7")
    a("s_add_u32 s50, s50, s51")
    a("buffer_store_short v16, v10, s[32:35], s50 offen")
    a.lab("K3_END")
    a("s_endpgm")
    return a.txt(), kd(name, 96), name

def main(out, NT=" nt"):
    k1, d1, n1 = gen_k1()
    k2, d2, n2 = gen_k2(NT)
    k3, d3, n3 = gen_k3()
    s = f"""; generated by gen2.py
; @launch kernel={n1} grid=(368,1,1) block=(64,1,1) lds=32768
; @launch kernel={n2} grid=(256,1,1) block=(512,1,1) lds=131072
; @launch kernel={n3} grid=(368,1,1) block=(512,1,1) lds=18688
.amdgcn_target "amdgcn-amd-amdhsa--gfx950"
.text
"""
    s += k1 + k2 + k3
    s += '.section .rodata,"a"\n' + d1 + d2 + d3
    open(out, "w").write(s)
if __name__ == "__main__":
    main(sys.argv[1])
```

```python
import sys, struct
from gen1 import A, srd, kd, kstart, rbf, sigmoid, f2u, PFX, WS_SIZE
from gen2 import merge, LOG2E, SCALE
QP  = 0x00000
GP  = 0x40000
UP  = 0x60000
ACC = 0x80000
CNT = 0x84000
PWS = 0x100000
STW = 0x200000
QL = 0x20000

def stamp(a, idx, dbg, srdn=24, wave="s20"):
    if not dbg: return
    a("s_memrealtime s[60:61]")
    a("s_waitcnt lgkmcnt(0)")
    a("v_mov_b32 v15, s60")
    a("s_lshl_b32 s62, s2, 4")
    a(f"s_add_u32 s62, s62, {wave}")
    a("s_lshl_b32 s62, s62, 6")
    a(f"s_add_u32 s62, s62, {STW}")
    a("v_mov_b32 v14, 0")
    a(f"buffer_store_dword v15, v14, s[{srdn}:{srdn+3}], s62 offen offset:{idx*4}")

def gen_k1():
    a = A(); name = PFX + "_k1_kernel"
    kstart(a, name)
    a("s_cmp_ge_u32 s2, 480")
    a("s_cbranch_scc1 K1_END")
    a("s_load_dwordx2 s[4:5], s[0:1], 0")
    a("s_load_dwordx2 s[6:7], s[0:1], 24")
    a("s_load_dwordx4 s[8:11], s[0:1], 48")
    a("s_load_dwordx2 s[12:13], s[0:1], 96")
    a("v_lshrrev_b32 v3, 4, v0")
    a("v_and_b32 v4, 15, v0")
    a("v_and_b32 v5, 3, v0")
    a("v_lshrrev_b32 v6, 3, v0")
    a("v_and_b32 v7, 7, v0")
    a("s_and_b32 s32, s2, 3")
    a("s_lshr_b32 s33, s2, 2")
    a("s_waitcnt lgkmcnt(0)")
    srd(a, 16, 4, 4096)
    srd(a, 28, 12, WS_SIZE)
    a("s_cmp_ge_u32 s33, 64")
    a("s_cbranch_scc1 K1_GU")
    srd(a, 20, 6, 512*8192)
    a("s_movk_i32 s34, 0x2000")
    a(f"s_mov_b32 s35, {QP}")
    a("s_mov_b32 s36, 0x4000")
    a("s_branch K1_GO")
    a.lab("K1_GU")
    a("s_sub_u32 s33, s33, 64")
    a("s_movk_i32 s34, 3584")
    a("s_movk_i32 s36, 7168")
    a("s_cmp_ge_u32 s33, 28")
    a("s_cbranch_scc1 K1_U")
    srd(a, 20, 8, 512*3584)
    a(f"s_mov_b32 s35, {GP}")
    a("s_branch K1_GO")
    a.lab("K1_U")
    a("s_sub_u32 s33, s33, 28")
    srd(a, 20, 10, 512*3584)
    a(f"s_mov_b32 s35, {UP}")
    a.lab("K1_GO")
    a("v_mul_lo_u32 v8, v6, s34")
    a("v_lshl_add_u32 v8, v7, 4, v8")
    a("s_lshl_b32 s37, s32, 7")
    a("s_mul_i32 s37, s37, s34")
    a("s_lshl_b32 s38, s33, 7")
    a("s_add_u32 s37, s37, s38")
    a("s_lshl_b32 s38, s34, 3")
    for i in range(16):
        a(f"buffer_load_dwordx4 v[{32+4*i}:{35+4*i}], v8, s[20:23], s37 offen nt")
        if i < 15: a("s_add_u32 s37, s37, s38")
    a("v_lshlrev_b32 v9, 10, v5")
    a("v_lshl_add_u32 v9, v3, 4, v9")
    a("s_lshl_b32 s39, s32, 8")
    for j in range(4):
        a(f"buffer_load_dwordx4 v[{16+4*j}:{19+4*j}], v9, s[16:19], s39 offen offset:{j*64}")
    a("s_cmp_ge_u32 s2, 68")
    a("s_cbranch_scc1 K1_NZ")
    a("s_lshl_b32 s40, s2, 8")
    a(f"s_add_u32 s40, s40, {ACC}")
    a("v_lshlrev_b32 v10, 2, v0")
    a("v_mov_b32 v11, 0")
    a("buffer_store_dword v11, v10, s[28:31], s40 offen")
    a.lab("K1_NZ")
    a("v_lshlrev_b32 v10, 4, v0")
    a("v_lshrrev_b32 v11, 2, v4")
    a("v_lshl_add_u32 v11, v3, 3, v11")
    a("v_lshlrev_b32 v11, 7, v11")
    a("v_lshl_add_u32 v11, v5, 3, v11")
    a("s_waitcnt vmcnt(0)")
    for i in range(16):
        a(f"ds_write_b128 v10, v[{32+4*i}:{35+4*i}] offset:{i*1024}")
    a("s_waitcnt lgkmcnt(0)")
    for nt in range(4):
        for j in range(4):
            q = 32 + 4*(nt*4+j)
            a(f"ds_read_b64_tr_b16 v[{q}:{q+1}], v11 offset:{j*4096+nt*32}")
            a(f"ds_read_b64_tr_b16 v[{q+2}:{q+3}], v11 offset:{j*4096+nt*32+512}")
    a("s_waitcnt lgkmcnt(0)")
    for nt in range(4):
        for j in range(4):
            q = 32 + 4*(nt*4+j)
            c = "0" if j == 0 else f"v[{96+4*nt}:{99+4*nt}]"
            a(f"v_mfma_f32_16x16x32_bf16 v[{96+4*nt}:{99+4*nt}], v[{q}:{q+3}], v[{16+4*j}:{19+4*j}], {c}")
    a("v_mul_lo_u32 v12, v4, s36")
    a("v_lshl_add_u32 v12, v3, 4, v12")
    a("s_lshl_b32 s40, s32, 2")
    a("s_mul_i32 s40, s40, s36")
    a("s_add_u32 s40, s40, s35")
    a("s_lshl_b32 s41, s33, 8")
    a("s_add_u32 s40, s40, s41")
    a("v_cmp_gt_u32 vcc, 4, v4")
    a("s_and_saveexec_b64 s[42:43], vcc")
    a("s_nop 7")
    for nt in range(4):
        a(f"buffer_store_dwordx4 v[{96+4*nt}:{99+4*nt}], v12, s[28:31], s40 offen offset:{nt*64}")
    a.lab("K1_END")
    a("s_endpgm")
    return a.txt(), kd(name, 112), name

def gen_k2(NT=" nt", dbg=False):
    a = A(); name = PFX + "_k2_kernel"
    kstart(a, name)
    a("s_cmp_ge_u32 s2, 256")
    a("s_cbranch_scc1 K2_END")
    a("s_load_dwordx4 s[4:7], s[0:1], 8")
    a("s_load_dwordx2 s[10:11], s[0:1], 96")
    a("v_lshrrev_b32 v1, 6, v0")
    a("v_and_b32 v2, 63, v0")
    a("v_readfirstlane_b32 s20, v1")
    a("v_lshrrev_b32 v3, 4, v2")
    a("v_and_b32 v4, 15, v2")
    a("s_lshl_b32 s21, s2, 18")
    a("s_lshl_b32 s22, s20, 15")
    a("s_add_u32 s21, s21, s22")
    a("s_lshl_b32 s23, s20, 14")
    a("v_lshlrev_b32 v5, 8, v4")
    a("v_lshl_add_u32 v5, v3, 4, v5")
    a("v_lshlrev_b32 v6, 1, v3")
    a("v_xor_b32 v7, v4, v6")
    a("v_lshlrev_b32 v7, 4, v7")
    a("v_lshl_add_u32 v7, v3, 8, v7")
    a("v_xor_b32 v8, 0x80, v7")
    a("s_waitcnt lgkmcnt(0)")
    srd(a, 12, 4, 0x4000000)
    srd(a, 16, 6, 0x4000000)
    srd(a, 24, 10, WS_SIZE)
    stamp(a, 0, dbg)
    a("s_lshr_b32 s32, s2, 6")
    a("s_lshl_b32 s32, s32, 14")
    a("s_lshr_b32 s33, s2, 3")
    a("s_and_b32 s33, s33, 7")
    a("s_lshl_b32 s33, s33, 11")
    a("s_add_u32 s32, s32, s33")
    a("v_lshlrev_b32 v9, 2, v0")
    for kb in range(4):
        a(f"s_add_u32 s34, s32, {QP + kb*65536}")
        a(f"buffer_load_dword v{16+kb}, v9, s[24:27], s34 offen")
    KB = 64
    def issue_k(r):
        for T in range(4):
            a(f"s_add_u32 s34, s21, {r*16384+T*4096}")
            for j in range(4):
                q = KB + (T*4+j)*4
                a(f"buffer_load_dwordx4 v[{q}:{q+3}], v5, s[12:15], s34 offen offset:{j*64}{NT}")
    def issue_v(r):
        for i in range(16):
            a(f"s_add_u32 m0, s23, {i*1024}")
            a(f"s_add_u32 s34, s21, {r*16384+i*1024}")
            a(f"buffer_load_dwordx4 v{7+(i&1)}, s[16:19], s34 offen{NT} lds")
    issue_k(0); issue_v(0)
    a("v_lshrrev_b32 v10, 2, v4")
    a("v_and_b32 v11, 3, v4")
    a("v_lshl_add_u32 v12, v3, 2, v10")
    a("v_and_b32 v13, 7, v12")
    a("v_lshlrev_b32 v12, 8, v12")
    a("v_lshl_add_u32 v12, v11, 3, v12")
    a("v_add_u32 v12, s23, v12")
    for t in range(8):
        a(f"v_xor_b32 v14, {t}, v13")
        a(f"v_lshl_add_u32 v{40+t}, v14, 5, v12")
    a(f"s_mov_b32 s40, {f2u(LOG2E)}")
    a(f"s_mov_b32 s41, {f2u(SCALE)}")
    a(f"s_mov_b32 s42, 0xffff0000")
    a("s_waitcnt vmcnt(32)")
    a("v_add_f32 v16, v16, v17")
    a("v_add_f32 v18, v18, v19")
    a("v_add_f32 v16, v16, v18")
    a("v_cvt_pk_bf16_f32 v16, v16, v16")
    a("v_lshlrev_b32 v9, 1, v0")
    a(f"v_add_u32 v9, {QL}, v9")
    a("ds_write_b16 v9, v16")
    a("v_lshlrev_b32 v9, 8, v11")
    a("v_lshl_add_u32 v9, v3, 4, v9")
    a(f"v_add_u32 v9, {QL}, v9")
    a("s_waitcnt lgkmcnt(0)")
    a("s_barrier")
    for j in range(4):
        a(f"ds_read_b128 v[{16+4*j}:{19+4*j}], v9 offset:{j*64}")
    a("s_waitcnt lgkmcnt(0)")
    S = 48; O = 128; P = 32; VF = 160
    M, L, T0, T1, AL = 10, 11, 12, 13, 14
    for r in range(2):
        a("s_waitcnt vmcnt(16)")
        if r == 0: stamp(a, 1, False)
        for T in range(4):
            for j in range(4):
                q = KB + (T*4+j)*4
                c = "0" if j == 0 else f"v[{S+4*T}:{S+4*T+3}]"
                a(f"v_mfma_f32_16x16x32_bf16 v[{S+4*T}:{S+4*T+3}], v[{q}:{q+3}], v[{16+4*j}:{19+4*j}], {c}")
        if r == 0:
            a("s_nop 7")
            issue_k(1)
        a("s_nop 7"); a("s_nop 1")
        for k in range(0, 16, 2):
            a(f"v_cvt_pk_bf16_f32 v{T0}, v{S+k}, v{S+k+1}")
            a(f"v_lshlrev_b32 v{S+k}, 16, v{T0}")
            a(f"v_and_b32 v{S+k+1}, s42, v{T0}")
            a(f"v_mul_f32 v{S+k}, s41, v{S+k}")
            a(f"v_mul_f32 v{S+k+1}, s41, v{S+k+1}")
            a(f"v_cvt_pk_bf16_f32 v{T0}, v{S+k}, v{S+k+1}")
            a(f"v_lshlrev_b32 v{S+k}, 16, v{T0}")
            a(f"v_and_b32 v{S+k+1}, s42, v{T0}")
        a(f"v_max3_f32 v{T0}, v{S}, v{S+1}, v{S+2}")
        for k in range(3, 15, 2):
            a(f"v_max3_f32 v{T0}, v{T0}, v{S+k}, v{S+k+1}")
        a(f"v_max_f32 v{T0}, v{T0}, v{S+15}")
        a(f"v_mov_b32 v{T1}, v{T0}")
        a("s_nop 1")
        a(f"v_permlane32_swap_b32 v{T0}, v{T1}")
        a("s_nop 1")
        a(f"v_max_f32 v{T0}, v{T0}, v{T1}")
        a(f"v_mov_b32 v{T1}, v{T0}")
        a("s_nop 1")
        a(f"v_permlane16_swap_b32 v{T0}, v{T1}")
        a("s_nop 1")
        a(f"v_max_f32 v{T0}, v{T0}, v{T1}")
        if r == 0:
            a(f"v_mov_b32 v{M}, v{T0}")
        else:
            a(f"v_max_f32 v{T0}, v{T0}, v{M}")
            a(f"v_sub_f32 v{AL}, v{M}, v{T0}")
            a(f"v_mul_f32 v{AL}, s40, v{AL}")
            a(f"v_exp_f32 v{AL}, v{AL}")
            a(f"v_mov_b32 v{M}, v{T0}")
        for k in range(16):
            a(f"v_sub_f32 v{S+k}, v{S+k}, v{M}")
        for k in range(16):
            a(f"v_mul_f32 v{S+k}, s40, v{S+k}")
        for k in range(16):
            a(f"v_exp_f32 v{S+k}, v{S+k}")
        a("s_nop 0")
        if r == 0:
            a(f"v_add_f32 v{L}, v{S}, v{S+1}")
            ks = 2
        else:
            a(f"v_fma_f32 v{L}, v{L}, v{AL}, v{S}")
            ks = 1
            for k in range(32):
                a(f"v_mul_f32 v{O+k}, v{O+k}, v{AL}")
        for k in range(ks, 16):
            a(f"v_add_f32 v{L}, v{L}, v{S+k}")
        for k in range(8):
            a(f"v_cvt_pk_bf16_f32 v{P+k}, v{S+2*k}, v{S+2*k+1}")
        a("s_waitcnt vmcnt(16)" if r == 0 else "s_waitcnt vmcnt(0)")
        for u in range(2):
            for t in range(8):
                a(f"ds_read_b64_tr_b16 v[{VF+4*t}:{VF+4*t+1}], v{40+t} offset:{u*8192}")
                a(f"ds_read_b64_tr_b16 v[{VF+4*t+2}:{VF+4*t+3}], v{40+t} offset:{u*8192+4096}")
            for t in range(8):
                a(f"s_waitcnt lgkmcnt({14-2*t})")
                c = "0" if (r == 0 and u == 0) else f"v[{O+4*t}:{O+4*t+3}]"
                a(f"v_mfma_f32_16x16x32_bf16 v[{O+4*t}:{O+4*t+3}], v[{VF+4*t}:{VF+4*t+3}], v[{P+4*u}:{P+4*u+3}], {c}")
            a("s_nop 7")
        if r == 0:
            issue_v(1)
    a(f"v_mov_b32 v{T1}, v{L}")
    a("s_nop 1")
    a(f"v_permlane32_swap_b32 v{L}, v{T1}")
    a("s_nop 1")
    a(f"v_add_f32 v{L}, v{L}, v{T1}")
    a(f"v_mov_b32 v{T1}, v{L}")
    a("s_nop 1")
    a(f"v_permlane16_swap_b32 v{L}, v{T1}")
    a("s_nop 1")
    a(f"v_add_f32 v{L}, v{L}, v{T1}")
    a("v_lshlrev_b32 v5, 9, v4")
    a("v_lshl_add_u32 v5, v3, 4, v5")
    a("v_add_u32 v5, s23, v5")
    a("v_lshlrev_b32 v6, 3, v4")
    a("v_add_u32 v6, s23, v6")
    a("v_cmp_gt_u32 vcc, 4, v4")
    a("s_and_saveexec_b64 s[36:37], vcc")
    for t in range(8):
        a(f"ds_write_b128 v5, v[{O+4*t}:{O+4*t+3}] offset:{t*64}")
    a(f"ds_write_b64 v6, v[{M}:{L}] offset:2048")
    a("s_mov_b64 exec, s[36:37]")
    stamp(a, 2, dbg)
    a("s_waitcnt lgkmcnt(0)")
    a("s_barrier")
    a("v_lshrrev_b32 v5, 7, v0")
    a("v_lshlrev_b32 v5, 3, v5")
    a("v_lshlrev_b32 v6, 2, v0")
    a("v_add_u32 v7, 0x10000, v5")
    a("v_add_u32 v8, 0x10000, v6")
    for w in range(8):
        a(f"ds_read_b64 v[{16+2*w}:{17+2*w}], v{5 if w<4 else 7} offset:{(w&3)*16384+2048}")
        a(f"ds_read_b32 v{32+w}, v{6 if w<4 else 8} offset:{(w&3)*16384}")
    a("s_waitcnt lgkmcnt(0)")
    merge(a)
    a("s_lshl_b32 s34, s2, 12")
    a(f"s_add_u32 s34, s34, {PWS}")
    a("buffer_store_dword v12, v6, s[24:27], s34 offen")
    a("v_and_b32 v7, 127, v0")
    a("v_cmp_eq_u32 vcc, 0, v7")
    a("s_and_saveexec_b64 s[36:37], vcc")
    a("buffer_store_dwordx2 v[10:11], v5, s[24:27], s34 offen offset:2048")
    a("s_mov_b64 exec, s[36:37]")
    stamp(a, 3, dbg)
    a.lab("K2_END")
    a("s_endpgm")
    return a.txt(), kd(name, 192), name

def gen_k3(dbg=False):
    WOL, AOP, DT, FL = 0, 16384, 17408, 18432
    a = A(); name = PFX + "_k3_kernel"
    kstart(a, name)
    a("s_cmp_ge_u32 s2, 368")
    a("s_cbranch_scc1 K3_END")
    a("s_load_dwordx2 s[4:5], s[0:1], 0")
    a("s_load_dwordx2 s[6:7], s[0:1], 32")
    a("s_load_dwordx4 s[8:11], s[0:1], 64")
    a("s_load_dwordx2 s[12:13], s[0:1], 80")
    a("s_load_dwordx2 s[14:15], s[0:1], 96")
    a("v_lshrrev_b32 v1, 6, v0")
    a("v_and_b32 v2, 63, v0")
    a("v_readfirstlane_b32 s44, v1")
    a("v_lshrrev_b32 v3, 4, v2")
    a("v_and_b32 v4, 3, v2")
    a(f"s_mov_b32 s40, {f2u(LOG2E)}")
    a("v_lshrrev_b32 v5, 3, v2")
    a("v_lshlrev_b32 v5, 10, v5")
    a("v_and_b32 v6, 7, v2")
    a("v_lshl_add_u32 v5, v6, 4, v5")
    a("s_waitcnt lgkmcnt(0)")
    srd(a, 16, 4, 4096)
    srd(a, 28, 10, 1024)
    srd(a, 32, 12, 4096)
    srd(a, 36, 14, WS_SIZE)
    a("s_cmp_ge_u32 s2, 256")
    a("s_cbranch_scc1 K3_DOWN")
    srd(a, 20, 6, 4096*1024)
    a("s_and_b32 s45, s2, 31")
    a("s_lshr_b32 s46, s2, 5")
    a("s_mov_b32 s47, 0")
    def wload():
        a("s_lshl_b32 s48, s45, 17")
        a("s_lshl_b32 s49, s46, 7")
        a("s_add_u32 s48, s48, s49")
        a("s_lshl_b32 s49, s44, 14")
        a("s_add_u32 s48, s48, s49")
        a("s_lshl_b32 s49, s44, 11")
        for i in range(2):
            a(f"s_add_u32 m0, s49, {WOL+i*1024}")
            a(f"s_add_u32 s50, s48, {i*8192}")
            a(f"buffer_load_dwordx4 v5, s[20:23], s50 offen nt lds")
    wload()
    a("v_lshrrev_b32 v7, 7, v0")
    a("v_lshlrev_b32 v7, 18, v7")
    a("v_and_b32 v8, 127, v0")
    a("v_lshl_add_u32 v8, v8, 2, v7")
    a("s_lshr_b32 s50, s45, 2")
    a("s_lshl_b32 s50, s50, 15")
    a(f"s_add_u32 s50, s50, {PWS}")
    a("s_and_b32 s51, s45, 3")
    a("s_lshl_b32 s52, s51, 9")
    a("s_add_u32 s52, s52, s50")
    a("s_lshl_b32 s53, s51, 3")
    a("s_add_u32 s53, s53, s50")
    for s in range(8):
        a(f"s_add_u32 s54, s52, {s*4096}")
        a(f"s_add_u32 s55, s53, {s*4096}")
        a(f"buffer_load_dword v{32+s}, v8, s[36:39], s54 offen")
        a(f"buffer_load_dwordx2 v[{16+2*s}:{17+2*s}], v7, s[36:39], s55 offen offset:2048")
    a("s_waitcnt vmcnt(0)")
    merge(a)
    a("v_rcp_f32 v11, v11")
    a("s_nop 0")
    a("v_mul_f32 v12, v12, v11")
    a("s_branch K3_A")
    a.lab("K3_DOWN")
    srd(a, 20, 8, 1792*1024)
    a("s_sub_u32 s45, s2, 256")
    a("s_and_b32 s46, s45, 7")
    a("s_lshr_b32 s45, s45, 3")
    a("s_mov_b32 s47, 8192")
    wload()
    a("v_lshrrev_b32 v7, 7, v0")
    a("v_mul_u32_u24 v7, 7168, v7")
    a("v_and_b32 v8, 127, v0")
    a("v_lshl_add_u32 v8, v8, 2, v7")
    a("s_lshl_b32 s50, s45, 9")
    for kq in range(4):
        a(f"s_add_u32 s54, s50, {GP+kq*28672}")
        a(f"s_add_u32 s55, s50, {UP+kq*28672}")
        a(f"buffer_load_dword v{16+kq}, v8, s[36:39], s54 offen")
        a(f"buffer_load_dword v{20+kq}, v8, s[36:39], s55 offen")
    a("s_waitcnt vmcnt(0)")
    a("v_add_f32 v16, v16, v17")
    a("v_add_f32 v18, v18, v19")
    a("v_add_f32 v20, v20, v21")
    a("v_add_f32 v22, v22, v23")
    a("v_add_f32 v16, v16, v18")
    a("v_add_f32 v20, v20, v22")
    rbf(a, 16); rbf(a, 20)
    sigmoid(a, 16, 17)
    rbf(a, 16)
    a("v_mul_f32 v12, v16, v20")
    a.lab("K3_A")
    a("v_cvt_pk_bf16_f32 v12, v12, v12")
    a("v_lshlrev_b32 v9, 1, v0")
    a(f"ds_write_b16 v9, v12 offset:{AOP}")
    a("s_waitcnt lgkmcnt(0)")
    a("s_barrier")
    a("s_cmp_ge_u32 s44, 4")
    a("s_cbranch_scc1 K3_JOIN")
    a("v_lshlrev_b32 v9, 8, v4")
    a("v_lshl_add_u32 v9, v3, 4, v9")
    for j in range(4):
        a(f"ds_read_b128 v[{64+4*j}:{67+4*j}], v9 offset:{AOP+j*64}")
    a("v_and_b32 v7, 15, v2")
    a("v_lshrrev_b32 v7, 2, v7")
    a("v_lshl_add_u32 v7, v3, 3, v7")
    a("v_lshlrev_b32 v7, 7, v7")
    a("v_lshl_add_u32 v7, v4, 3, v7")
    a("s_lshl_b32 s50, s44, 5")
    a("v_add_u32 v7, s50, v7")
    for j in range(4):
        a(f"ds_read_b64_tr_b16 v[{80+4*j}:{81+4*j}], v7 offset:{WOL+j*4096}")
        a(f"ds_read_b64_tr_b16 v[{82+4*j}:{83+4*j}], v7 offset:{WOL+j*4096+512}")
    a("s_waitcnt lgkmcnt(0)")
    for j in range(4):
        c = "0" if j == 0 else "v[16:19]"
        a(f"v_mfma_f32_16x16x32_bf16 v[16:19], v[{64+4*j}:{67+4*j}], v[{80+4*j}:{83+4*j}], {c}")
    a("s_nop 7"); a("s_nop 1")
    a("v_lshlrev_b32 v9, 2, v2")
    a("s_lshl_b32 s50, s44, 6")
    a("v_add_u32 v9, s50, v9")
    a("v_cmp_gt_u32 vcc, 16, v2")
    a("s_and_saveexec_b64 s[56:57], vcc")
    for r in range(4):
        a(f"ds_write_b32 v9, v{16+r} offset:{DT+r*256}")
    a("s_mov_b64 exec, s[56:57]")
    a("s_waitcnt lgkmcnt(0)")
    a.lab("K3_JOIN")
    a("s_barrier")
    a("s_cmp_lg_u32 s44, 0")
    a("s_cbranch_scc1 K3_W")
    a("v_lshlrev_b32 v9, 2, v2")
    for r in range(4):
        a(f"ds_read_b32 v{16+r}, v9 offset:{DT+r*256}")
    a("s_lshl_b32 s50, s46, 8")
    a("s_add_u32 s50, s50, s47")
    a(f"s_add_u32 s50, s50, {ACC}")
    a("s_add_u32 s51, s50, 4096")
    a("s_waitcnt lgkmcnt(0)")
    for r in range(4):
        a(f"buffer_atomic_add_f32 v{16+r}, v9, s[36:39], s{50+(r>>1)} offen offset:{(r&1)*2048}")
    a("s_waitcnt vmcnt(0)")
    a("s_lshl_b32 s50, s46, 7")
    a(f"s_add_u32 s50, s50, {CNT}")
    a("v_mov_b32 v8, 1")
    a("v_mov_b32 v9, 0")
    a("v_cmp_eq_u32 vcc, 0, v2")
    a("s_and_saveexec_b64 s[56:57], vcc")
    a("buffer_atomic_add v8, v9, s[36:39], s50 offen sc0 sc1")
    a("s_waitcnt vmcnt(0)")
    a(f"ds_write_b32 v9, v8 offset:{FL}")
    a("s_waitcnt lgkmcnt(0)")
    a("s_mov_b64 exec, s[56:57]")
    a.lab("K3_W")
    a("s_barrier")
    a("v_mov_b32 v9, 0")
    a(f"ds_read_b32 v8, v9 offset:{FL}")
    a("s_waitcnt lgkmcnt(0)")
    a("v_readfirstlane_b32 s50, v8")
    a("s_cmp_lg_u32 s50, 45")
    a("s_cbranch_scc1 K3_END")
    a("s_cmp_ge_u32 s44, 4")
    a("s_cbranch_scc1 K3_END")
    a("v_lshlrev_b32 v9, 2, v2")
    a("s_lshl_b32 s50, s46, 8")
    a("s_lshl_b32 s51, s44, 11")
    a("s_add_u32 s50, s50, s51")
    a(f"s_add_u32 s50, s50, {ACC}")
    a("s_add_u32 s51, s50, 8192")
    a("buffer_load_dword v16, v9, s[36:39], s50 offen sc1")
    a("buffer_load_dword v24, v9, s[36:39], s51 offen sc1")
    a("v_lshlrev_b32 v10, 4, v2")
    a("s_lshl_b32 s51, s44, 10")
    a("buffer_load_dwordx4 v[64:67], v10, s[16:19], s51 offen")
    a("buffer_load_dwordx4 v[80:83], v10, s[28:31], 0 offen")
    a("s_waitcnt vmcnt(0)")
    a("v_mov_b32 v12, 0")
    for k in range(4):
        a(f"v_lshlrev_b32 v13, 16, v{64+k}")
        a(f"v_lshlrev_b32 v14, 16, v{80+k}")
        a("v_mul_f32 v13, v13, v14")
        rbf(a, 13)
        a("v_add_f32 v12, v12, v13")
        a(f"v_and_b32 v13, 0xffff0000, v{64+k}")
        a(f"v_and_b32 v14, 0xffff0000, v{80+k}")
        a("v_mul_f32 v13, v13, v14")
        rbf(a, 13)
        a("v_add_f32 v12, v12, v13")
    for sh in (8, 4, 2, 1):
        a("s_nop 1")
        a(f"v_add_f32_dpp v12, v12, v12 row_ror:{sh} row_mask:0xf bank_mask:0xf")
    a("v_mov_b32 v13, v12")
    a("s_nop 1")
    a("v_permlane32_swap_b32 v12, v13")
    a("s_nop 1")
    a("v_add_f32 v12, v12, v13")
    a("v_mov_b32 v13, v12")
    a("s_nop 1")
    a("v_permlane16_swap_b32 v12, v13")
    a("s_nop 1")
    a("v_add_f32 v12, v12, v13")
    rbf(a, 12)
    sigmoid(a, 12, 13)
    rbf(a, 12)
    rbf(a, 16); rbf(a, 24)
    a("v_sub_f32 v13, 1.0, v12")
    rbf(a, 13)
    a("v_mul_f32 v16, v12, v16")
    rbf(a, 16)
    a("v_mul_f32 v24, v13, v24")
    rbf(a, 24)
    a("v_add_f32 v16, v16, v24")
    a("v_cvt_pk_bf16_f32 v16, v16, v16")
    a("v_lshlrev_b32 v10, 1, v2")
    a("s_lshl_b32 s50, s46, 7")
    a("s_add_u32 s50, s50, s51")
    a("buffer_store_short v16, v10, s[32:35], s50 offen")
    a.lab("K3_END")
    a("s_endpgm")
    return a.txt(), kd(name, 96), name

def main(out, dbg=False):
    k1, d1, n1 = gen_k1()
    k2, d2, n2 = gen_k2(" nt", dbg)
    k3, d3, n3 = gen_k3(dbg)
    s = f"""; generated by gen4.py
; @launch kernel={n1} grid=(480,1,1) block=(64,1,1) lds=16384
; @launch kernel={n2} grid=(256,1,1) block=(512,1,1) lds=132096
; @launch kernel={n3} grid=(368,1,1) block=(512,1,1) lds=18688
.amdgcn_target "amdgcn-amd-amdhsa--gfx950"
.text
"""
    s += k1 + k2 + k3
    s += '.section .rodata,"a"\n' + d1 + d2 + d3
    open(out, "w").write(s)
if __name__ == "__main__":
    main(sys.argv[1], len(sys.argv) > 2 and sys.argv[2] == "dbg")
```

```python
import sys, struct
from gen1 import A, srd, kd, kstart, rbf, sigmoid, f2u, PFX, WS_SIZE
from gen2 import merge, LOG2E, SCALE
import gen4
from gen4 import QP, GP, UP, ACC, CNT, PWS, STW, QL, stamp, gen_k1, gen_k3

def attention_core(a, NT, dbg, qwait, D0=64):
    a("v_and_b32 v5, 7, v4")
    a("v_lshlrev_b32 v5, 8, v5")
    a("v_lshrrev_b32 v6, 3, v4")
    a("v_lshl_add_u32 v6, v6, 2, v3")
    a("v_lshl_add_u32 v5, v6, 4, v5")
    a("v_lshlrev_b32 v6, 1, v3")
    a("v_xor_b32 v7, v4, v6")
    a("v_lshlrev_b32 v7, 4, v7")
    a("v_lshl_add_u32 v7, v3, 8, v7")
    a("v_xor_b32 v8, 0x80, v7")
    a("s_lshl_b32 s34, s2, 3")
    a("s_add_u32 s34, s34, s20")
    a("s_mul_i32 s34, s34, 0x9E3779B1")
    a("s_lshr_b32 s34, s34, 29")
    for t in range(8):
        a(f"s_add_u32 s35, s34, {t}")
        a("s_and_b32 s35, s35, 7")
        a("s_lshl_b32 s35, s35, 12")
        a(f"s_add_u32 s{64+t}, s35, s21")
    KB = 64
    cnt = [0]
    def pace():
        if cnt[0] >= D0 and cnt[0] < 32: a(f"s_waitcnt vmcnt({D0-1})")
        cnt[0] += 1
    def issue_k(t):
        for j in range(4):
            q = KB + ((t&3)*4+j)*4
            pace()
            a(f"buffer_load_dwordx4 v[{q}:{q+3}], v5, s[12:15], s{64+t} offen offset:{(j>>1)*2048+(j&1)*128}{NT}")
    def issue_v(t):
        a(f"s_add_u32 m0, s23, {(t&3)*4096}")
        a("s_nop 0")
        for i in range(4):
            pace()
            a(f"buffer_load_dwordx4 v{7+(i&1)}, s[16:19], s{64+t} offen offset:{i*1024}{NT} lds")
    issue_k(0); issue_k(1); issue_v(0); issue_v(1); issue_k(2); issue_k(3); issue_v(2); issue_v(3)
    a("v_lshrrev_b32 v10, 2, v4")
    a("v_and_b32 v11, 3, v4")
    a("v_lshl_add_u32 v12, v3, 2, v10")
    a("v_and_b32 v13, 7, v12")
    a("v_lshlrev_b32 v12, 8, v12")
    a("v_lshl_add_u32 v12, v11, 3, v12")
    a("v_add_u32 v12, s23, v12")
    for t in range(8):
        a(f"v_xor_b32 v14, {t}, v13")
        a(f"v_lshl_add_u32 v{40+t}, v14, 5, v12")
    a(f"s_mov_b32 s40, {f2u(LOG2E)}")
    a(f"s_mov_b32 s41, {f2u(SCALE)}")
    a(f"s_mov_b32 s42, 0xffff0000")
    qwait()
    a("v_lshlrev_b32 v9, 8, v11")
    a("v_and_b32 v14, 1, v10")
    a("v_lshl_add_u32 v9, v14, 6, v9")
    a("v_lshl_add_u32 v9, v3, 4, v9")
    a(f"v_add_u32 v9, {QL}, v9")
    for ln in range(2):
        a(f"ds_read_b128 v[{16+4*ln}:{19+4*ln}], v9 offset:{ln*128}")
    a("s_waitcnt lgkmcnt(0)")
    S = 48; O = 128; P = 32; VF = 48; D = 24
    M, L, T0, T1, AL = 10, 11, 12, 13, 14
    kw = [24, 24, 24, 8]; vw = [24, 24, 16, 0]
    for u in range(4):
        a(f"s_waitcnt vmcnt({kw[u]})")
        DD = [24, 28, 56, 60]
        for tt in range(2):
            t = 2*u + tt
            for hb in range(2):
                d = DD[2*tt+hb]
                for ln in range(2):
                    q = KB + ((t&3)*4 + hb*2 + ln)*4
                    c = "0" if ln == 0 else f"v[{d}:{d+3}]"
                    a(f"v_mfma_f32_16x16x32_bf16 v[{d}:{d+3}], v[{q}:{q+3}], v[{16+4*ln}:{19+4*ln}], {c}")
        a("s_nop 7")
        if u < 2:
            issue_k(2*u+4); issue_k(2*u+5)
        else:
            a("s_nop 3")
        for tt in range(2):
            for r in range(4):
                a(f"v_permlane32_swap_b32 v{DD[2*tt]+r}, v{DD[2*tt+1]+r}")
        a("s_nop 1")
        for tt in range(2):
            for r in range(4):
                a(f"v_add_f32_dpp v{S+4*tt+r}, v{DD[2*tt+1]+r}, v{DD[2*tt]+r} row_shl:4 row_mask:0xf bank_mask:0xf bound_ctrl:1")
        for k in range(0, 8, 2):
            a(f"v_cvt_pk_bf16_f32 v{T0}, v{S+k}, v{S+k+1}")
            a(f"v_lshlrev_b32 v{S+k}, 16, v{T0}")
            a(f"v_and_b32 v{S+k+1}, s42, v{T0}")
            a(f"v_mul_f32 v{S+k}, s41, v{S+k}")
            a(f"v_mul_f32 v{S+k+1}, s41, v{S+k+1}")
            a(f"v_cvt_pk_bf16_f32 v{T0}, v{S+k}, v{S+k+1}")
            a(f"v_lshlrev_b32 v{S+k}, 16, v{T0}")
            a(f"v_and_b32 v{S+k+1}, s42, v{T0}")
        a(f"v_max3_f32 v{T0}, v{S}, v{S+1}, v{S+2}")
        a(f"v_max3_f32 v{T0}, v{T0}, v{S+3}, v{S+4}")
        a(f"v_max3_f32 v{T0}, v{T0}, v{S+5}, v{S+6}")
        a(f"v_max_f32 v{T0}, v{T0}, v{S+7}")
        a(f"v_mov_b32 v{T1}, v{T0}")
        a("s_nop 1")
        a(f"v_permlane32_swap_b32 v{T0}, v{T1}")
        a("s_nop 1")
        a(f"v_max_f32 v{T0}, v{T0}, v{T1}")
        a(f"v_mov_b32 v{T1}, v{T0}")
        a("s_nop 1")
        a(f"v_permlane16_swap_b32 v{T0}, v{T1}")
        a("s_nop 1")
        a(f"v_max_f32 v{T0}, v{T0}, v{T1}")
        if u == 0:
            a(f"v_mov_b32 v{M}, v{T0}")
        else:
            a(f"v_max_f32 v{T0}, v{T0}, v{M}")
            a(f"v_sub_f32 v{AL}, v{M}, v{T0}")
            a(f"v_mul_f32 v{AL}, s40, v{AL}")
            a(f"v_exp_f32 v{AL}, v{AL}")
            a(f"v_mov_b32 v{M}, v{T0}")
        for k in range(8):
            a(f"v_sub_f32 v{S+k}, v{S+k}, v{M}")
        for k in range(8):
            a(f"v_mul_f32 v{S+k}, s40, v{S+k}")
        for k in range(8):
            a(f"v_exp_f32 v{S+k}, v{S+k}")
        a("s_nop 0")
        if u == 0:
            a(f"v_add_f32 v{L}, v{S}, v{S+1}")
            ks = 2
        else:
            a(f"v_fma_f32 v{L}, v{L}, v{AL}, v{S}")
            ks = 1
            for k in range(32):
                a(f"v_mul_f32 v{O+k}, v{O+k}, v{AL}")
        for k in range(ks, 8):
            a(f"v_add_f32 v{L}, v{L}, v{S+k}")
        for k in range(4):
            a(f"v_cvt_pk_bf16_f32 v{P+k}, v{S+2*k}, v{S+2*k+1}")
        a(f"s_waitcnt vmcnt({vw[u]})")
        vo = (u & 1) * 8192
        for th in range(2):
            for t4 in range(4):
                t = th*4 + t4
                a(f"ds_read_b64_tr_b16 v[{VF+4*t4}:{VF+4*t4+1}], v{40+t} offset:{vo}")
                a(f"ds_read_b64_tr_b16 v[{VF+4*t4+2}:{VF+4*t4+3}], v{40+t} offset:{vo+4096}")
            for t4 in range(4):
                t = th*4 + t4
                a(f"s_waitcnt lgkmcnt({6-2*t4})")
                c = "0" if u == 0 else f"v[{O+4*t}:{O+4*t+3}]"
                a(f"v_mfma_f32_16x16x32_bf16 v[{O+4*t}:{O+4*t+3}], v[{VF+4*t4}:{VF+4*t4+3}], v[{P}:{P+3}], {c}")
            if th == 0: a("s_nop 7")
        if u < 2:
            issue_v(2*u+4); issue_v(2*u+5)
        a("s_nop 7")
    a("s_nop 3")
    a(f"v_mov_b32 v{T1}, v{L}")
    a("s_nop 1")
    a(f"v_permlane32_swap_b32 v{L}, v{T1}")
    a("s_nop 1")
    a(f"v_add_f32 v{L}, v{L}, v{T1}")
    a(f"v_mov_b32 v{T1}, v{L}")
    a("s_nop 1")
    a(f"v_permlane16_swap_b32 v{L}, v{T1}")
    a("s_nop 1")
    a(f"v_add_f32 v{L}, v{L}, v{T1}")

def gen_k2(NT=" nt", dbg=False):
    a = A(); name = PFX + "_k2_kernel"
    kstart(a, name)
    a("s_cmp_ge_u32 s2, 256")
    a("s_cbranch_scc1 K2_END")
    a("s_load_dwordx4 s[4:7], s[0:1], 8")
    a("s_load_dwordx2 s[10:11], s[0:1], 96")
    a("v_lshrrev_b32 v1, 6, v0")
    a("v_and_b32 v2, 63, v0")
    a("v_readfirstlane_b32 s20, v1")
    a("v_lshrrev_b32 v3, 4, v2")
    a("v_and_b32 v4, 15, v2")
    a("s_lshl_b32 s21, s2, 18")
    a("s_lshl_b32 s22, s20, 15")
    a("s_add_u32 s21, s21, s22")
    a("s_lshl_b32 s23, s20, 14")
    a("s_waitcnt lgkmcnt(0)")
    srd(a, 12, 4, 0x4000000)
    srd(a, 16, 6, 0x4000000)
    srd(a, 24, 10, WS_SIZE)
    stamp(a, 0, dbg)
    a("s_lshr_b32 s32, s2, 6")
    a("s_lshl_b32 s32, s32, 14")
    a("s_lshr_b32 s33, s2, 3")
    a("s_and_b32 s33, s33, 7")
    a("s_lshl_b32 s33, s33, 11")
    a("s_add_u32 s32, s32, s33")
    a("v_lshlrev_b32 v9, 2, v0")
    for kb in range(4):
        a(f"s_add_u32 s34, s32, {QP + kb*65536}")
        a(f"buffer_load_dword v{16+kb}, v9, s[24:27], s34 offen")
    def qwait():
        a("s_waitcnt vmcnt(32)")
        a("v_add_f32 v16, v16, v17")
        a("v_add_f32 v18, v18, v19")
        a("v_add_f32 v16, v16, v18")
        a("v_cvt_pk_bf16_f32 v16, v16, v16")
        a("v_lshlrev_b32 v9, 1, v0")
        a(f"v_add_u32 v9, {QL}, v9")
        a("ds_write_b16 v9, v16")
        a("s_waitcnt lgkmcnt(0)")
        a("s_barrier")
    attention_core(a, NT, dbg, qwait)
    O = 128; M, L = 10, 11
    a("v_lshlrev_b32 v5, 9, v4")
    a("v_lshl_add_u32 v5, v3, 4, v5")
    a("v_add_u32 v5, s23, v5")
    a("v_lshlrev_b32 v6, 3, v4")
    a("v_add_u32 v6, s23, v6")
    a("v_cmp_gt_u32 vcc, 4, v4")
    a("s_and_saveexec_b64 s[36:37], vcc")
    for t in range(8):
        a(f"ds_write_b128 v5, v[{O+4*t}:{O+4*t+3}] offset:{t*64}")
    a(f"ds_write_b64 v6, v[{M}:{L}] offset:2048")
    a("s_mov_b64 exec, s[36:37]")
    stamp(a, 2, dbg)
    a("s_waitcnt lgkmcnt(0)")
    a("s_barrier")
    a("v_lshrrev_b32 v5, 7, v0")
    a("v_lshlrev_b32 v5, 3, v5")
    a("v_lshlrev_b32 v6, 2, v0")
    a("v_add_u32 v7, 0x10000, v5")
    a("v_add_u32 v8, 0x10000, v6")
    for w in range(8):
        a(f"ds_read_b64 v[{16+2*w}:{17+2*w}], v{5 if w<4 else 7} offset:{(w&3)*16384+2048}")
        a(f"ds_read_b32 v{32+w}, v{6 if w<4 else 8} offset:{(w&3)*16384}")
    a("s_waitcnt lgkmcnt(0)")
    merge(a)
    a("s_lshl_b32 s34, s2, 12")
    a(f"s_add_u32 s34, s34, {PWS}")
    a("buffer_store_dword v12, v6, s[24:27], s34 offen")
    a("v_and_b32 v7, 127, v0")
    a("v_cmp_eq_u32 vcc, 0, v7")
    a("s_and_saveexec_b64 s[36:37], vcc")
    a("buffer_store_dwordx2 v[10:11], v5, s[24:27], s34 offen offset:2048")
    a("s_mov_b64 exec, s[36:37]")
    stamp(a, 3, dbg)
    a.lab("K2_END")
    a("s_endpgm")
    return a.txt(), kd(name, 160), name

def main(out, dbg=False):
    k1, d1, n1 = gen_k1()
    k2, d2, n2 = gen_k2(" nt", dbg)
    k3, d3, n3 = gen_k3(dbg)
    s = f"""; generated by gen6.py
; @launch kernel={n1} grid=(480,1,1) block=(64,1,1) lds=16384
; @launch kernel={n2} grid=(256,1,1) block=(512,1,1) lds=132096
; @launch kernel={n3} grid=(368,1,1) block=(512,1,1) lds=18688
.amdgcn_target "amdgcn-amd-amdhsa--gfx950"
.text
"""
    s += k1 + k2 + k3
    s += '.section .rodata,"a"\n' + d1 + d2 + d3
    open(out, "w").write(s)
if __name__ == "__main__":
    main(sys.argv[1], len(sys.argv) > 2 and sys.argv[2] == "dbg")
```

```python
import sys, struct
from gen1 import A, srd, kd, kstart, rbf, sigmoid, f2u, PFX, WS_SIZE
from gen2 import merge, LOG2E, SCALE
import gen4, gen6
from gen4 import QP, GP, UP, ACC, CNT, PWS, STW, stamp, gen_k3
SCB = 0x20000
QL  = 0x24000
LDS_F = 0x24400

def block_task(a, sc, sc1):
    a("v_lshrrev_b32 v6, 3, v2")
    a("v_and_b32 v7, 7, v2")
    a("v_and_b32 v5, 3, v2")
    a("v_mul_lo_u32 v8, v6, s34")
    a("v_lshl_add_u32 v8, v7, 4, v8")
    a("s_lshl_b32 s38, s34, 3")
    for i in range(16):
        a(f"buffer_load_dwordx4 v[{32+4*i}:{35+4*i}], v8, s[44:47], s37 offen nt")
        if i < 15: a("s_add_u32 s37, s37, s38")
    a("v_lshlrev_b32 v9, 10, v5")
    a("v_lshl_add_u32 v9, v3, 4, v9")
    for j in range(4):
        a(f"buffer_load_dwordx4 v[{16+4*j}:{19+4*j}], v9, s[28:31], s39 offen offset:{j*64}")
    a("v_lshlrev_b32 v10, 4, v2")
    a(f"v_add_u32 v10, {sc}, v10")
    a("v_lshrrev_b32 v11, 2, v4")
    a("v_lshl_add_u32 v11, v3, 3, v11")
    a("v_lshlrev_b32 v11, 7, v11")
    a("v_lshl_add_u32 v11, v5, 3, v11")
    a(f"v_add_u32 v11, {sc}, v11")
    a("s_waitcnt vmcnt(0)")
    for i in range(16):
        a(f"ds_write_b128 v10, v[{32+4*i}:{35+4*i}] offset:{i*1024}")
    a("s_waitcnt lgkmcnt(0)")
    for nt in range(4):
        for j in range(4):
            q = 32 + 4*(nt*4+j)
            a(f"ds_read_b64_tr_b16 v[{q}:{q+1}], v11 offset:{j*4096+nt*32}")
            a(f"ds_read_b64_tr_b16 v[{q+2}:{q+3}], v11 offset:{j*4096+nt*32+512}")
    a("s_waitcnt lgkmcnt(0)")
    for nt in range(4):
        for j in range(4):
            q = 32 + 4*(nt*4+j)
            c = "0" if j == 0 else f"v[{96+4*nt}:{99+4*nt}]"
            a(f"v_mfma_f32_16x16x32_bf16 v[{96+4*nt}:{99+4*nt}], v[{q}:{q+3}], v[{16+4*j}:{19+4*j}], {c}")
    a("v_mul_lo_u32 v12, v4, s36")
    a("v_lshl_add_u32 v12, v3, 4, v12")
    a("v_cmp_gt_u32 vcc, 4, v4")
    a("s_and_saveexec_b64 s[42:43], vcc")
    a("s_nop 7")
    for nt in range(4):
        a(f"buffer_store_dwordx4 v[{96+4*nt}:{99+4*nt}], v12, s[24:27], s40 offen offset:{nt*64}{sc1}")
    a("s_mov_b64 exec, s[42:43]")

def gen_f(NT=" nt", dbg=False, early=True, D0=64):
    a = A(); name = PFX + "_f_kernel"
    kstart(a, name)
    a("s_cmp_ge_u32 s2, 256")
    a("s_cbranch_scc1 F_END")
    a("s_load_dwordx4 s[4:7], s[0:1], 8")
    a("s_load_dwordx4 s[8:11], s[0:1], 88")
    a("s_load_dwordx2 s[50:51], s[0:1], 0")
    a("s_load_dwordx2 s[52:53], s[0:1], 24")
    a("s_load_dwordx4 s[56:59], s[0:1], 48")
    a("v_lshrrev_b32 v1, 6, v0")
    a("v_and_b32 v2, 63, v0")
    a("v_readfirstlane_b32 s20, v1")
    a("v_lshrrev_b32 v3, 4, v2")
    a("v_and_b32 v4, 15, v2")
    a("s_lshr_b32 s32, s2, 6")
    a("s_lshr_b32 s33, s2, 3")
    a("s_and_b32 s33, s33, 7")
    a("s_waitcnt lgkmcnt(0)")
    srd(a, 24, 10, WS_SIZE)
    a("s_cmp_ge_u32 s20, 8")
    a("s_cbranch_scc1 F_AUX")
    a("s_lshl_b32 s21, s2, 18")
    a("s_lshl_b32 s22, s20, 15")
    a("s_add_u32 s21, s21, s22")
    a("s_lshl_b32 s23, s20, 14")
    srd(a, 12, 4, 0x4000000)
    srd(a, 16, 6, 0x4000000)
    stamp(a, 0, dbg)
    a("s_barrier")
    def qwait():
        a("s_barrier")
        stamp(a, 1, dbg)
    gen6.QL = QL
    core = A()
    gen6.attention_core(core, NT, dbg, lambda: (core("s_barrier"), stamp(core, 1, dbg)), D0)
    txt = core.txt()
    a.l.append(txt.rstrip("\n"))
    O = 128; M, L = 10, 11
    a("v_lshlrev_b32 v5, 9, v4")
    a("v_lshl_add_u32 v5, v3, 4, v5")
    a("v_add_u32 v5, s23, v5")
    a("v_lshlrev_b32 v6, 3, v4")
    a("v_add_u32 v6, s23, v6")
    a("v_cmp_gt_u32 vcc, 4, v4")
    a("s_and_saveexec_b64 s[36:37], vcc")
    for t in range(8):
        a(f"ds_write_b128 v5, v[{O+4*t}:{O+4*t+3}] offset:{t*64}")
    a(f"ds_write_b64 v6, v[{M}:{L}] offset:2048")
    a("s_mov_b64 exec, s[36:37]")
    stamp(a, 2, dbg)
    a("s_waitcnt lgkmcnt(0)")
    a("s_barrier")
    a("v_lshrrev_b32 v5, 7, v0")
    a("v_lshlrev_b32 v5, 3, v5")
    a("v_lshlrev_b32 v6, 2, v0")
    a("v_add_u32 v7, 0x10000, v5")
    a("v_add_u32 v8, 0x10000, v6")
    for w in range(8):
        a(f"ds_read_b64 v[{16+2*w}:{17+2*w}], v{5 if w<4 else 7} offset:{(w&3)*16384+2048}")
        a(f"ds_read_b32 v{32+w}, v{6 if w<4 else 8} offset:{(w&3)*16384}")
    a("s_waitcnt lgkmcnt(0)")
    merge(a)
    a("s_lshl_b32 s34, s2, 12")
    a(f"s_add_u32 s34, s34, {PWS}")
    a("buffer_store_dword v12, v6, s[24:27], s34 offen")
    a("v_and_b32 v7, 127, v0")
    a("v_cmp_eq_u32 vcc, 0, v7")
    a("s_and_saveexec_b64 s[36:37], vcc")
    a("buffer_store_dwordx2 v[10:11], v5, s[24:27], s34 offen offset:2048")
    a("s_mov_b64 exec, s[36:37]")
    stamp(a, 3, dbg)
    a("s_endpgm")
    a.lab("F_AUX")
    srd(a, 28, 50, 4096)
    a("s_cmp_eq_u32 s20, 9")
    a("s_cbranch_scc1 F_AUXB")
    stamp(a, 0, dbg)
    srd(a, 44, 52, 512*8192)
    srd(a, 72, 8, 256)
    a("s_movk_i32 s34, 0x2000")
    a("s_mov_b32 s36, 0x4000")
    a("s_and_b32 s35, s2, 63")
    a("s_lshl_b32 s37, s32, 20")
    a("s_lshl_b32 s38, s35, 7")
    a("s_add_u32 s37, s37, s38")
    a("s_lshl_b32 s39, s32, 8")
    a("s_lshl_b32 s40, s32, 16")
    a("s_lshl_b32 s38, s35, 8")
    a("s_add_u32 s40, s40, s38")
    a(f"s_add_u32 s40, s40, {QP}")
    block_task(a, 0, " sc1")
    a("s_waitcnt vmcnt(0)")
    stamp(a, 1, dbg)
    a("s_lshl_b32 s49, s33, 5")
    a("v_mov_b32 v14, 0")
    a("v_mov_b32 v15, 1")
    a("v_cmp_eq_u32 vcc, 0, v2")
    a("s_and_saveexec_b64 s[42:43], vcc")
    a("buffer_atomic_add v15, v14, s[72:75], s49 offen sc0 sc1")
    a("s_waitcnt vmcnt(0)")
    a("v_readfirstlane_b32 s54, v15")
    a("s_add_u32 s54, s54, 1")
    if early: a("s_barrier")
    a("s_cmp_ge_u32 s54, 32")
    a("s_cbranch_scc1 F_GOTQ")
    a.lab("F_POLL")
    a("s_sleep 8")
    a("buffer_load_dword v15, v14, s[72:75], s49 offen sc1")
    a("s_waitcnt vmcnt(0)")
    a("v_readfirstlane_b32 s54, v15")
    a("s_cmp_lt_u32 s54, 32")
    a("s_cbranch_scc1 F_POLL")
    a.lab("F_GOTQ")
    a("s_mov_b64 exec, s[42:43]")
    if not early: a("s_barrier")
    stamp(a, 2, dbg)
    a("s_lshl_b32 s49, s32, 14")
    a("s_lshl_b32 s54, s33, 11")
    a("s_add_u32 s49, s49, s54")
    a("v_lshlrev_b32 v14, 5, v2")
    for kb in range(4):
        a(f"s_add_u32 s54, s49, {QP+kb*65536}")
        a(f"buffer_load_dwordx4 v[{16+8*kb}:{19+8*kb}], v14, s[24:27], s54 offen sc1")
        a(f"buffer_load_dwordx4 v[{20+8*kb}:{23+8*kb}], v14, s[24:27], s54 offen offset:16 sc1")
    a("s_cmp_ge_u32 s2, 68")
    a("s_cbranch_scc1 F_NZ")
    a("s_lshl_b32 s49, s2, 8")
    a(f"s_add_u32 s49, s49, {ACC}")
    a("v_lshlrev_b32 v12, 2, v2")
    a("v_mov_b32 v13, 0")
    a("s_waitcnt vmcnt(0)")
    a("buffer_store_dword v13, v12, s[24:27], s49 offen")
    a("s_branch F_NZ2")
    a.lab("F_NZ")
    a("s_waitcnt vmcnt(0)")
    a.lab("F_NZ2")
    a("v_lshlrev_b32 v14, 4, v2")
    a(f"v_add_u32 v14, {QL}, v14")
    for k in range(8):
        a(f"v_add_f32 v{16+k}, v{16+k}, v{24+k}")
        a(f"v_add_f32 v{32+k}, v{32+k}, v{40+k}")
    for k in range(8):
        a(f"v_add_f32 v{16+k}, v{16+k}, v{32+k}")
    for k in range(4):
        a(f"v_cvt_pk_bf16_f32 v{16+k}, v{16+2*k}, v{17+2*k}")
    a("ds_write_b128 v14, v[16:19]")
    a("s_waitcnt lgkmcnt(0)")
    stamp(a, 3, dbg)
    a("s_barrier")
    a("s_endpgm")
    a.lab("F_AUXB")
    a("s_cmp_ge_u32 s2, 224")
    a("s_cbranch_scc1 F_END")
    a("s_and_b32 s48, s2, 3")
    a("s_lshr_b32 s35, s2, 2")
    a(f"s_mov_b32 s40, {GP}")
    a("s_mov_b32 s44, s56")
    a("s_mov_b32 s45, s57")
    a("s_cmp_lt_u32 s35, 28")
    a("s_cbranch_scc1 F_G")
    a("s_sub_u32 s35, s35, 28")
    a(f"s_mov_b32 s40, {UP}")
    a("s_mov_b32 s44, s58")
    a("s_mov_b32 s45, s59")
    a.lab("F_G")
    a("s_and_b32 s45, s45, 0xffff")
    a(f"s_mov_b32 s46, {512*3584}")
    a("s_mov_b32 s47, 0x00020000")
    a("s_movk_i32 s34, 3584")
    a("s_movk_i32 s36, 7168")
    a(f"s_mul_i32 s37, s48, {128*3584}")
    a("s_lshl_b32 s38, s35, 7")
    a("s_add_u32 s37, s37, s38")
    a("s_lshl_b32 s39, s48, 8")
    a(f"s_mul_i32 s38, s48, {4*7168}")
    a("s_add_u32 s40, s40, s38")
    a("s_lshl_b32 s38, s35, 8")
    a("s_add_u32 s40, s40, s38")
    block_task(a, SCB, "")
    a.lab("F_END")
    a("s_endpgm")
    return a.txt(), kd(name, 168), name

def main(out, dbg=False, early=True, D0=64):
    k2, d2, n2 = gen_f(" nt", dbg, early, D0)
    k3, d3, n3 = gen_k3(dbg)
    s = f"""; generated by gen7.py
; @launch kernel={n2} grid=(256,1,1) block=(640,1,1) lds={LDS_F}
; @launch kernel={n3} grid=(368,1,1) block=(512,1,1) lds=18688
.amdgcn_target "amdgcn-amd-amdhsa--gfx950"
.text
"""
    s += k2 + k3
    s += '.section .rodata,"a"\n' + d2 + d3
    open(out, "w").write(s)
if __name__ == "__main__":
    main(sys.argv[1], sys.argv[2] == "dbg", sys.argv[3] == "early", int(sys.argv[4]))
```

```python
import sys, struct
from gen1 import A, srd, kd, kstart, rbf, sigmoid, f2u, PFX, WS_SIZE
from gen2 import merge, LOG2E, SCALE
import gen4
from gen4 import QP, GP, UP, ACC, CNT, PWS, STW, QL, stamp, gen_k1, gen_k3

def attention_core(a, NT, dbg, qwait):
    a("v_and_b32 v5, 7, v4")
    a("v_lshlrev_b32 v5, 8, v5")
    a("v_lshrrev_b32 v6, 3, v4")
    a("v_lshl_add_u32 v6, v6, 2, v3")
    a("v_lshl_add_u32 v5, v6, 4, v5")
    a("v_lshlrev_b32 v6, 1, v3")
    a("v_xor_b32 v7, v4, v6")
    a("v_lshlrev_b32 v7, 4, v7")
    a("v_lshl_add_u32 v7, v3, 8, v7")
    a("v_xor_b32 v8, 0x80, v7")
    a("s_lshl_b32 s34, s2, 3")
    a("s_add_u32 s34, s34, s20")
    a("s_mul_i32 s34, s34, 0x9E3779B1")
    a("s_lshr_b32 s34, s34, 29")
    for t in range(8):
        a(f"s_add_u32 s35, s34, {t}")
        a("s_and_b32 s35, s35, 7")
        a("s_lshl_b32 s35, s35, 12")
        a(f"s_add_u32 s{64+t}, s35, s21")
    KB = 64
    def issue_k(t):
        for j in range(4):
            q = KB + ((t&3)*4+j)*4
            a(f"buffer_load_dwordx4 v[{q}:{q+3}], v5, s[12:15], s{64+t} offen offset:{(j>>1)*2048+(j&1)*128}{NT}")
    def issue_v(t):
        a(f"s_add_u32 m0, s23, {(t&3)*4096}")
        a("s_nop 0")
        for i in range(4):
            a(f"buffer_load_dwordx4 v{7+(i&1)}, s[16:19], s{64+t} offen offset:{i*1024}{NT} lds")
    issue_k(0); issue_k(1); issue_v(0); issue_v(1); issue_k(2); issue_k(3); issue_v(2); issue_v(3)
    a("v_lshrrev_b32 v10, 2, v4")
    a("v_and_b32 v11, 3, v4")
    a("v_lshl_add_u32 v12, v3, 2, v10")
    a("v_and_b32 v13, 7, v12")
    a("v_lshlrev_b32 v12, 8, v12")
    a("v_lshl_add_u32 v12, v11, 3, v12")
    a("v_add_u32 v12, s23, v12")
    for t in range(8):
        a(f"v_xor_b32 v14, {t}, v13")
        a(f"v_lshl_add_u32 v{40+t}, v14, 5, v12")
    a(f"s_mov_b32 s40, {f2u(LOG2E)}")
    a(f"s_mov_b32 s41, {f2u(SCALE)}")
    a(f"s_mov_b32 s42, 0xffff0000")
    qwait()
    a("v_lshlrev_b32 v9, 8, v11")
    a("v_and_b32 v14, 1, v10")
    a("v_lshl_add_u32 v9, v14, 6, v9")
    a("v_lshl_add_u32 v9, v3, 4, v9")
    a(f"v_add_u32 v9, {QL}, v9")
    for ln in range(2):
        a(f"ds_read_b128 v[{16+4*ln}:{19+4*ln}], v9 offset:{ln*128}")
    a("s_waitcnt lgkmcnt(0)")
    S = 48; O = 128; P = 32; VF = 48; D = 24
    M, L, T0, T1, AL = 10, 11, 12, 13, 14
    kw = [24, 24, 24, 8]; vw = [24, 24, 16, 0]
    for u in range(4):
        a(f"s_waitcnt vmcnt({kw[u]})")
        DD = [24, 28, 56, 60]
        for tt in range(2):
            t = 2*u + tt
            for hb in range(2):
                d = DD[2*tt+hb]
                for ln in range(2):
                    q = KB + ((t&3)*4 + hb*2 + ln)*4
                    c = "0" if ln == 0 else f"v[{d}:{d+3}]"
                    a(f"v_mfma_f32_16x16x32_bf16 v[{d}:{d+3}], v[{q}:{q+3}], v[{16+4*ln}:{19+4*ln}], {c}")
        a("s_nop 7")
        if u < 2:
            issue_k(2*u+4); issue_k(2*u+5)
        else:
            a("s_nop 3")
        for tt in range(2):
            for r in range(4):
                a(f"v_permlane32_swap_b32 v{DD[2*tt]+r}, v{DD[2*tt+1]+r}")
        a("s_nop 1")
        for tt in range(2):
            for r in range(4):
                a(f"v_add_f32_dpp v{S+4*tt+r}, v{DD[2*tt+1]+r}, v{DD[2*tt]+r} row_shl:4 row_mask:0xf bank_mask:0xf bound_ctrl:1")
        for k in range(0, 8, 2):
            a(f"v_cvt_pk_bf16_f32 v{T0}, v{S+k}, v{S+k+1}")
            a(f"v_lshlrev_b32 v{S+k}, 16, v{T0}")
            a(f"v_and_b32 v{S+k+1}, s42, v{T0}")
            a(f"v_mul_f32 v{S+k}, s41, v{S+k}")
            a(f"v_mul_f32 v{S+k+1}, s41, v{S+k+1}")
            a(f"v_cvt_pk_bf16_f32 v{T0}, v{S+k}, v{S+k+1}")
            a(f"v_lshlrev_b32 v{S+k}, 16, v{T0}")
            a(f"v_and_b32 v{S+k+1}, s42, v{T0}")
        a(f"v_max3_f32 v{T0}, v{S}, v{S+1}, v{S+2}")
        a(f"v_max3_f32 v{T0}, v{T0}, v{S+3}, v{S+4}")
        a(f"v_max3_f32 v{T0}, v{T0}, v{S+5}, v{S+6}")
        a(f"v_max_f32 v{T0}, v{T0}, v{S+7}")
        a(f"v_mov_b32 v{T1}, v{T0}")
        a("s_nop 1")
        a(f"v_permlane32_swap_b32 v{T0}, v{T1}")
        a("s_nop 1")
        a(f"v_max_f32 v{T0}, v{T0}, v{T1}")
        a(f"v_mov_b32 v{T1}, v{T0}")
        a("s_nop 1")
        a(f"v_permlane16_swap_b32 v{T0}, v{T1}")
        a("s_nop 1")
        a(f"v_max_f32 v{T0}, v{T0}, v{T1}")
        if u == 0:
            a(f"v_mov_b32 v{M}, v{T0}")
        else:
            a(f"v_max_f32 v{T0}, v{T0}, v{M}")
            a(f"v_sub_f32 v{AL}, v{M}, v{T0}")
            a(f"v_mul_f32 v{AL}, s40, v{AL}")
            a(f"v_exp_f32 v{AL}, v{AL}")
            a(f"v_mov_b32 v{M}, v{T0}")
        for k in range(8):
            a(f"v_sub_f32 v{S+k}, v{S+k}, v{M}")
        for k in range(8):
            a(f"v_mul_f32 v{S+k}, s40, v{S+k}")
        for k in range(8):
            a(f"v_exp_f32 v{S+k}, v{S+k}")
        a("s_nop 0")
        if u == 0:
            a(f"v_add_f32 v{L}, v{S}, v{S+1}")
            ks = 2
        else:
            a(f"v_fma_f32 v{L}, v{L}, v{AL}, v{S}")
            ks = 1
            for k in range(32):
                a(f"v_mul_f32 v{O+k}, v{O+k}, v{AL}")
        for k in range(ks, 8):
            a(f"v_add_f32 v{L}, v{L}, v{S+k}")
        for k in range(4):
            a(f"v_cvt_pk_bf16_f32 v{P+k}, v{S+2*k}, v{S+2*k+1}")
        a(f"s_waitcnt vmcnt({vw[u]})")
        vo = (u & 1) * 8192
        for th in range(2):
            for t4 in range(4):
                t = th*4 + t4
                a(f"ds_read_b64_tr_b16 v[{VF+4*t4}:{VF+4*t4+1}], v{40+t} offset:{vo}")
                a(f"ds_read_b64_tr_b16 v[{VF+4*t4+2}:{VF+4*t4+3}], v{40+t} offset:{vo+4096}")
            for t4 in range(4):
                t = th*4 + t4
                a(f"s_waitcnt lgkmcnt({6-2*t4})")
                c = "0" if u == 0 else f"v[{O+4*t}:{O+4*t+3}]"
                a(f"v_mfma_f32_16x16x32_bf16 v[{O+4*t}:{O+4*t+3}], v[{VF+4*t4}:{VF+4*t4+3}], v[{P}:{P+3}], {c}")
            if th == 0: a("s_nop 7")
        if u < 2:
            issue_v(2*u+4); issue_v(2*u+5)
        a("s_nop 7")
    a("s_nop 3")
    a(f"v_mov_b32 v{T1}, v{L}")
    a("s_nop 1")
    a(f"v_permlane32_swap_b32 v{L}, v{T1}")
    a("s_nop 1")
    a(f"v_add_f32 v{L}, v{L}, v{T1}")
    a(f"v_mov_b32 v{T1}, v{L}")
    a("s_nop 1")
    a(f"v_permlane16_swap_b32 v{L}, v{T1}")
    a("s_nop 1")
    a(f"v_add_f32 v{L}, v{L}, v{T1}")

def gen_k2(NT=" nt", dbg=False):
    a = A(); name = PFX + "_k2_kernel"
    kstart(a, name)
    a("s_cmp_ge_u32 s2, 256")
    a("s_cbranch_scc1 K2_END")
    a("s_load_dwordx4 s[4:7], s[0:1], 8")
    a("s_load_dwordx2 s[10:11], s[0:1], 96")
    a("v_lshrrev_b32 v1, 6, v0")
    a("v_and_b32 v2, 63, v0")
    a("v_readfirstlane_b32 s20, v1")
    a("v_lshrrev_b32 v3, 4, v2")
    a("v_and_b32 v4, 15, v2")
    a("s_lshl_b32 s21, s2, 18")
    a("s_lshl_b32 s22, s20, 15")
    a("s_add_u32 s21, s21, s22")
    a("s_lshl_b32 s23, s20, 14")
    a("s_waitcnt lgkmcnt(0)")
    srd(a, 12, 4, 0x4000000)
    srd(a, 16, 6, 0x4000000)
    srd(a, 24, 10, WS_SIZE)
    stamp(a, 0, dbg)
    a("s_lshr_b32 s32, s2, 6")
    a("s_lshl_b32 s32, s32, 14")
    a("s_lshr_b32 s33, s2, 3")
    a("s_and_b32 s33, s33, 7")
    a("s_lshl_b32 s33, s33, 11")
    a("s_add_u32 s32, s32, s33")
    a("v_lshlrev_b32 v9, 2, v0")
    for kb in range(4):
        a(f"s_add_u32 s34, s32, {QP + kb*65536}")
        a(f"buffer_load_dword v{16+kb}, v9, s[24:27], s34 offen")
    def qwait():
        a("s_waitcnt vmcnt(32)")
        a("v_add_f32 v16, v16, v17")
        a("v_add_f32 v18, v18, v19")
        a("v_add_f32 v16, v16, v18")
        a("v_cvt_pk_bf16_f32 v16, v16, v16")
        a("v_lshlrev_b32 v9, 1, v0")
        a(f"v_add_u32 v9, {QL}, v9")
        a("ds_write_b16 v9, v16")
        a("s_waitcnt lgkmcnt(0)")
        a("s_barrier")
    attention_core(a, NT, dbg, qwait)
    O = 128; M, L = 10, 11
    a("v_lshlrev_b32 v5, 9, v4")
    a("v_lshl_add_u32 v5, v3, 4, v5")
    a("v_add_u32 v5, s23, v5")
    a("v_lshlrev_b32 v6, 3, v4")
    a("v_add_u32 v6, s23, v6")
    a("v_cmp_gt_u32 vcc, 4, v4")
    a("s_and_saveexec_b64 s[36:37], vcc")
    for t in range(8):
        a(f"ds_write_b128 v5, v[{O+4*t}:{O+4*t+3}] offset:{t*64}")
    a(f"ds_write_b64 v6, v[{M}:{L}] offset:2048")
    a("s_mov_b64 exec, s[36:37]")
    stamp(a, 2, dbg)
    a("s_waitcnt lgkmcnt(0)")
    a("s_barrier")
    a("v_lshrrev_b32 v5, 7, v0")
    a("v_lshlrev_b32 v5, 3, v5")
    a("v_lshlrev_b32 v6, 2, v0")
    a("v_add_u32 v7, 0x10000, v5")
    a("v_add_u32 v8, 0x10000, v6")
    for w in range(8):
        a(f"ds_read_b64 v[{16+2*w}:{17+2*w}], v{5 if w<4 else 7} offset:{(w&3)*16384+2048}")
        a(f"ds_read_b32 v{32+w}, v{6 if w<4 else 8} offset:{(w&3)*16384}")
    a("s_waitcnt lgkmcnt(0)")
    merge(a)
    a("s_lshl_b32 s34, s2, 12")
    a(f"s_add_u32 s34, s34, {PWS}")
    a("buffer_store_dword v12, v6, s[24:27], s34 offen")
    a("v_and_b32 v7, 127, v0")
    a("v_cmp_eq_u32 vcc, 0, v7")
    a("s_and_saveexec_b64 s[36:37], vcc")
    a("buffer_store_dwordx2 v[10:11], v5, s[24:27], s34 offen offset:2048")
    a("s_mov_b64 exec, s[36:37]")
    stamp(a, 3, dbg)
    a.lab("K2_END")
    a("s_endpgm")
    return a.txt(), kd(name, 160), name

def main(out, dbg=False):
    k1, d1, n1 = gen_k1()
    k2, d2, n2 = gen_k2(" nt", dbg)
    k3, d3, n3 = gen_k3(dbg)
    s = f"""; generated by gen6.py
; @launch kernel={n1} grid=(480,1,1) block=(64,1,1) lds=16384
; @launch kernel={n2} grid=(256,1,1) block=(512,1,1) lds=132096
; @launch kernel={n3} grid=(368,1,1) block=(512,1,1) lds=18688
.amdgcn_target "amdgcn-amd-amdhsa--gfx950"
.text
"""
    s += k1 + k2 + k3
    s += '.section .rodata,"a"\n' + d1 + d2 + d3
    open(out, "w").write(s)
if __name__ == "__main__":
    main(sys.argv[1], len(sys.argv) > 2 and sys.argv[2] == "dbg")
```

```python
import sys, struct
from gen1 import A, srd, kd, kstart, rbf, sigmoid, f2u, PFX, WS_SIZE
from gen2 import merge, LOG2E, SCALE
import gen4, gen6
from gen4 import QP, GP, UP, ACC, CNT, PWS, STW, stamp, gen_k3
SCB = 0x20000
QL  = 0x24000
LDS_F = 0x24400

def block_task(a, sc, sc1):
    a("v_lshrrev_b32 v6, 3, v2")
    a("v_and_b32 v7, 7, v2")
    a("v_and_b32 v5, 3, v2")
    a("v_mul_lo_u32 v8, v6, s34")
    a("v_lshl_add_u32 v8, v7, 4, v8")
    a("s_lshl_b32 s38, s34, 3")
    for i in range(16):
        a(f"buffer_load_dwordx4 v[{32+4*i}:{35+4*i}], v8, s[44:47], s37 offen nt")
        if i < 15: a("s_add_u32 s37, s37, s38")
    a("v_lshlrev_b32 v9, 10, v5")
    a("v_lshl_add_u32 v9, v3, 4, v9")
    for j in range(4):
        a(f"buffer_load_dwordx4 v[{16+4*j}:{19+4*j}], v9, s[28:31], s39 offen offset:{j*64}")
    a("v_lshlrev_b32 v10, 4, v2")
    a(f"v_add_u32 v10, {sc}, v10")
    a("v_lshrrev_b32 v11, 2, v4")
    a("v_lshl_add_u32 v11, v3, 3, v11")
    a("v_lshlrev_b32 v11, 7, v11")
    a("v_lshl_add_u32 v11, v5, 3, v11")
    a(f"v_add_u32 v11, {sc}, v11")
    a("s_waitcnt vmcnt(0)")
    for i in range(16):
        a(f"ds_write_b128 v10, v[{32+4*i}:{35+4*i}] offset:{i*1024}")
    a("s_waitcnt lgkmcnt(0)")
    for nt in range(4):
        for j in range(4):
            q = 32 + 4*(nt*4+j)
            a(f"ds_read_b64_tr_b16 v[{q}:{q+1}], v11 offset:{j*4096+nt*32}")
            a(f"ds_read_b64_tr_b16 v[{q+2}:{q+3}], v11 offset:{j*4096+nt*32+512}")
    a("s_waitcnt lgkmcnt(0)")
    for nt in range(4):
        for j in range(4):
            q = 32 + 4*(nt*4+j)
            c = "0" if j == 0 else f"v[{96+4*nt}:{99+4*nt}]"
            a(f"v_mfma_f32_16x16x32_bf16 v[{96+4*nt}:{99+4*nt}], v[{q}:{q+3}], v[{16+4*j}:{19+4*j}], {c}")
    a("v_mul_lo_u32 v12, v4, s36")
    a("v_lshl_add_u32 v12, v3, 4, v12")
    a("v_cmp_gt_u32 vcc, 4, v4")
    a("s_and_saveexec_b64 s[42:43], vcc")
    a("s_nop 7")
    for nt in range(4):
        a(f"buffer_store_dwordx4 v[{96+4*nt}:{99+4*nt}], v12, s[24:27], s40 offen offset:{nt*64}{sc1}")
    a("s_mov_b64 exec, s[42:43]")

def gen_f(NT=" nt", dbg=False, early=True):
    a = A(); name = PFX + "_f_kernel"
    kstart(a, name)
    a("s_cmp_ge_u32 s2, 256")
    a("s_cbranch_scc1 F_END")
    a("s_load_dwordx4 s[4:7], s[0:1], 8")
    a("s_load_dwordx4 s[8:11], s[0:1], 88")
    a("s_load_dwordx2 s[50:51], s[0:1], 0")
    a("s_load_dwordx2 s[52:53], s[0:1], 24")
    a("s_load_dwordx4 s[56:59], s[0:1], 48")
    a("v_lshrrev_b32 v1, 6, v0")
    a("v_and_b32 v2, 63, v0")
    a("v_readfirstlane_b32 s20, v1")
    a("v_lshrrev_b32 v3, 4, v2")
    a("v_and_b32 v4, 15, v2")
    a("s_lshr_b32 s32, s2, 6")
    a("s_lshr_b32 s33, s2, 3")
    a("s_and_b32 s33, s33, 7")
    a("s_waitcnt lgkmcnt(0)")
    srd(a, 24, 10, WS_SIZE)
    a("s_cmp_ge_u32 s20, 8")
    a("s_cbranch_scc1 F_AUX")
    a("s_lshl_b32 s21, s2, 18")
    a("s_lshl_b32 s22, s20, 15")
    a("s_add_u32 s21, s21, s22")
    a("s_lshl_b32 s23, s20, 14")
    srd(a, 12, 4, 0x4000000)
    srd(a, 16, 6, 0x4000000)
    stamp(a, 0, dbg)
    a("s_barrier")
    def qwait():
        a("s_barrier")
        stamp(a, 1, dbg)
    gen6.QL = QL
    core = A()
    gen6.attention_core(core, NT, dbg, lambda: (core("s_barrier"), stamp(core, 1, dbg)))
    txt = core.txt()
    a.l.append(txt.rstrip("\n"))
    O = 128; M, L = 10, 11
    a("v_lshlrev_b32 v5, 9, v4")
    a("v_lshl_add_u32 v5, v3, 4, v5")
    a("v_add_u32 v5, s23, v5")
    a("v_lshlrev_b32 v6, 3, v4")
    a("v_add_u32 v6, s23, v6")
    a("v_cmp_gt_u32 vcc, 4, v4")
    a("s_and_saveexec_b64 s[36:37], vcc")
    for t in range(8):
        a(f"ds_write_b128 v5, v[{O+4*t}:{O+4*t+3}] offset:{t*64}")
    a(f"ds_write_b64 v6, v[{M}:{L}] offset:2048")
    a("s_mov_b64 exec, s[36:37]")
    stamp(a, 2, dbg)
    a("s_waitcnt lgkmcnt(0)")
    a("s_barrier")
    a("v_lshrrev_b32 v5, 7, v0")
    a("v_lshlrev_b32 v5, 3, v5")
    a("v_lshlrev_b32 v6, 2, v0")
    a("v_add_u32 v7, 0x10000, v5")
    a("v_add_u32 v8, 0x10000, v6")
    for w in range(8):
        a(f"ds_read_b64 v[{16+2*w}:{17+2*w}], v{5 if w<4 else 7} offset:{(w&3)*16384+2048}")
        a(f"ds_read_b32 v{32+w}, v{6 if w<4 else 8} offset:{(w&3)*16384}")
    a("s_waitcnt lgkmcnt(0)")
    merge(a)
    a("s_lshl_b32 s34, s2, 12")
    a(f"s_add_u32 s34, s34, {PWS}")
    a("buffer_store_dword v12, v6, s[24:27], s34 offen")
    a("v_and_b32 v7, 127, v0")
    a("v_cmp_eq_u32 vcc, 0, v7")
    a("s_and_saveexec_b64 s[36:37], vcc")
    a("buffer_store_dwordx2 v[10:11], v5, s[24:27], s34 offen offset:2048")
    a("s_mov_b64 exec, s[36:37]")
    stamp(a, 3, dbg)
    a("s_endpgm")
    a.lab("F_AUX")
    srd(a, 28, 50, 4096)
    a("s_cmp_eq_u32 s20, 9")
    a("s_cbranch_scc1 F_AUXB")
    stamp(a, 0, dbg)
    srd(a, 44, 52, 512*8192)
    srd(a, 72, 8, 256)
    a("s_movk_i32 s34, 0x2000")
    a("s_mov_b32 s36, 0x4000")
    a("s_and_b32 s35, s2, 63")
    a("s_lshl_b32 s37, s32, 20")
    a("s_lshl_b32 s38, s35, 7")
    a("s_add_u32 s37, s37, s38")
    a("s_lshl_b32 s39, s32, 8")
    a("s_lshl_b32 s40, s32, 16")
    a("s_lshl_b32 s38, s35, 8")
    a("s_add_u32 s40, s40, s38")
    a(f"s_add_u32 s40, s40, {QP}")
    block_task(a, 0, " sc1")
    a("s_waitcnt vmcnt(0)")
    stamp(a, 1, dbg)
    a("s_lshl_b32 s49, s33, 5")
    a("v_mov_b32 v14, 0")
    a("v_mov_b32 v15, 1")
    a("v_cmp_eq_u32 vcc, 0, v2")
    a("s_and_saveexec_b64 s[42:43], vcc")
    a("buffer_atomic_add v15, v14, s[72:75], s49 offen sc0 sc1")
    a("s_waitcnt vmcnt(0)")
    a("v_readfirstlane_b32 s54, v15")
    a("s_add_u32 s54, s54, 1")
    if early: a("s_barrier")
    a("s_cmp_ge_u32 s54, 32")
    a("s_cbranch_scc1 F_GOTQ")
    a.lab("F_POLL")
    a("s_sleep 8")
    a("buffer_load_dword v15, v14, s[72:75], s49 offen sc1")
    a("s_waitcnt vmcnt(0)")
    a("v_readfirstlane_b32 s54, v15")
    a("s_cmp_lt_u32 s54, 32")
    a("s_cbranch_scc1 F_POLL")
    a.lab("F_GOTQ")
    a("s_mov_b64 exec, s[42:43]")
    if not early: a("s_barrier")
    stamp(a, 2, dbg)
    a("s_lshl_b32 s49, s32, 14")
    a("s_lshl_b32 s54, s33, 11")
    a("s_add_u32 s49, s49, s54")
    a("v_lshlrev_b32 v14, 5, v2")
    for kb in range(4):
        a(f"s_add_u32 s54, s49, {QP+kb*65536}")
        a(f"buffer_load_dwordx4 v[{16+8*kb}:{19+8*kb}], v14, s[24:27], s54 offen sc1")
        a(f"buffer_load_dwordx4 v[{20+8*kb}:{23+8*kb}], v14, s[24:27], s54 offen offset:16 sc1")
    a("s_cmp_ge_u32 s2, 68")
    a("s_cbranch_scc1 F_NZ")
    a("s_lshl_b32 s49, s2, 8")
    a(f"s_add_u32 s49, s49, {ACC}")
    a("v_lshlrev_b32 v12, 2, v2")
    a("v_mov_b32 v13, 0")
    a("s_waitcnt vmcnt(0)")
    a("buffer_store_dword v13, v12, s[24:27], s49 offen")
    a("s_branch F_NZ2")
    a.lab("F_NZ")
    a("s_waitcnt vmcnt(0)")
    a.lab("F_NZ2")
    a("v_lshlrev_b32 v14, 4, v2")
    a(f"v_add_u32 v14, {QL}, v14")
    for k in range(8):
        a(f"v_add_f32 v{16+k}, v{16+k}, v{24+k}")
        a(f"v_add_f32 v{32+k}, v{32+k}, v{40+k}")
    for k in range(8):
        a(f"v_add_f32 v{16+k}, v{16+k}, v{32+k}")
    for k in range(4):
        a(f"v_cvt_pk_bf16_f32 v{16+k}, v{16+2*k}, v{17+2*k}")
    a("ds_write_b128 v14, v[16:19]")
    a("s_waitcnt lgkmcnt(0)")
    stamp(a, 3, dbg)
    a("s_barrier")
    a("s_endpgm")
    a.lab("F_AUXB")
    a("s_cmp_ge_u32 s2, 224")
    a("s_cbranch_scc1 F_END")
    a("s_and_b32 s48, s2, 3")
    a("s_lshr_b32 s35, s2, 2")
    a(f"s_mov_b32 s40, {GP}")
    a("s_mov_b32 s44, s56")
    a("s_mov_b32 s45, s57")
    a("s_cmp_lt_u32 s35, 28")
    a("s_cbranch_scc1 F_G")
    a("s_sub_u32 s35, s35, 28")
    a(f"s_mov_b32 s40, {UP}")
    a("s_mov_b32 s44, s58")
    a("s_mov_b32 s45, s59")
    a.lab("F_G")
    a("s_and_b32 s45, s45, 0xffff")
    a(f"s_mov_b32 s46, {512*3584}")
    a("s_mov_b32 s47, 0x00020000")
    a("s_movk_i32 s34, 3584")
    a("s_movk_i32 s36, 7168")
    a(f"s_mul_i32 s37, s48, {128*3584}")
    a("s_lshl_b32 s38, s35, 7")
    a("s_add_u32 s37, s37, s38")
    a("s_lshl_b32 s39, s48, 8")
    a(f"s_mul_i32 s38, s48, {4*7168}")
    a("s_add_u32 s40, s40, s38")
    a("s_lshl_b32 s38, s35, 8")
    a("s_add_u32 s40, s40, s38")
    block_task(a, SCB, "")
    a.lab("F_END")
    a("s_endpgm")
    return a.txt(), kd(name, 168), name

def main(out, dbg=False, early=True):
    k2, d2, n2 = gen_f(" nt", dbg, early)
    k3, d3, n3 = gen_k3(dbg)
    s = f"""; generated by gen7.py
; @launch kernel={n2} grid=(256,1,1) block=(640,1,1) lds={LDS_F}
; @launch kernel={n3} grid=(368,1,1) block=(512,1,1) lds=18688
.amdgcn_target "amdgcn-amd-amdhsa--gfx950"
.text
"""
    s += k2 + k3
    s += '.section .rodata,"a"\n' + d2 + d3
    open(out, "w").write(s)
if __name__ == "__main__":
    main(sys.argv[1], sys.argv[2] == "dbg", sys.argv[3] == "early")
```

```python
import sys, struct
from gen1 import A, srd, kd, kstart, rbf, sigmoid, f2u, PFX, WS_SIZE
from gen2 import merge, LOG2E, SCALE
import gen4
from gen4 import QP, GP, UP, ACC, CNT, PWS, STW, QL, stamp, gen_k1, gen_k3

def attention_core(a, NT, dbg, qwait, D0=64, PRE=None, QAT=32):
    a("v_and_b32 v5, 7, v4")
    a("v_lshlrev_b32 v5, 8, v5")
    a("v_lshrrev_b32 v6, 3, v4")
    a("v_lshl_add_u32 v6, v6, 2, v3")
    a("v_lshl_add_u32 v5, v6, 4, v5")
    a("v_lshlrev_b32 v6, 1, v3")
    a("v_xor_b32 v7, v4, v6")
    a("v_lshlrev_b32 v7, 4, v7")
    a("v_lshl_add_u32 v7, v3, 8, v7")
    a("v_xor_b32 v8, 0x80, v7")
    a("s_lshl_b32 s34, s2, 3")
    a("s_add_u32 s34, s34, s20")
    a("s_mul_i32 s34, s34, 0x9E3779B1")
    a("s_lshr_b32 s34, s34, 29")
    for t in range(8):
        a(f"s_add_u32 s35, s34, {t}")
        a("s_and_b32 s35, s35, 7")
        a("s_lshl_b32 s35, s35, 12")
        a(f"s_add_u32 s{64+t}, s35, s21")
    KB = 64
    cnt = [0]
    def pace():
        if PRE is not None and cnt[0] == PRE: a("s_barrier")
        if cnt[0] >= D0 and cnt[0] < QAT: a(f"s_waitcnt vmcnt({D0-1})")
        cnt[0] += 1
    def issue_k(t):
        for j in range(4):
            q = KB + ((t&3)*4+j)*4
            pace()
            a(f"buffer_load_dwordx4 v[{q}:{q+3}], v5, s[12:15], s{64+t} offen offset:{(j>>1)*2048+(j&1)*128}{NT}")
    def issue_v(t):
        a(f"s_add_u32 m0, s23, {(t&3)*4096}")
        a("s_nop 0")
        for i in range(4):
            pace()
            a(f"buffer_load_dwordx4 v{7+(i&1)}, s[16:19], s{64+t} offen offset:{i*1024}{NT} lds")
    issue_k(0); issue_k(1); issue_v(0); issue_v(1)
    if QAT == 32:
        issue_k(2); issue_k(3); issue_v(2); issue_v(3)
    a("v_lshrrev_b32 v10, 2, v4")
    a("v_and_b32 v11, 3, v4")
    a("v_lshl_add_u32 v12, v3, 2, v10")
    a("v_and_b32 v13, 7, v12")
    a("v_lshlrev_b32 v12, 8, v12")
    a("v_lshl_add_u32 v12, v11, 3, v12")
    a("v_add_u32 v12, s23, v12")
    for t in range(8):
        a(f"v_xor_b32 v14, {t}, v13")
        a(f"v_lshl_add_u32 v{40+t}, v14, 5, v12")
    a(f"s_mov_b32 s40, {f2u(LOG2E)}")
    a(f"s_mov_b32 s41, {f2u(SCALE)}")
    a(f"s_mov_b32 s42, 0xffff0000")
    qwait()
    if QAT == 16:
        issue_k(2); issue_k(3); issue_v(2); issue_v(3)
    a("v_lshlrev_b32 v9, 8, v11")
    a("v_and_b32 v14, 1, v10")
    a("v_lshl_add_u32 v9, v14, 6, v9")
    a("v_lshl_add_u32 v9, v3, 4, v9")
    a(f"v_add_u32 v9, {QL}, v9")
    for ln in range(2):
        a(f"ds_read_b128 v[{16+4*ln}:{19+4*ln}], v9 offset:{ln*128}")
    a("s_waitcnt lgkmcnt(0)")
    S = 48; O = 128; P = 32; VF = 48; D = 24
    M, L, T0, T1, AL = 10, 11, 12, 13, 14
    kw = [24, 24, 24, 8]; vw = [24, 24, 16, 0]
    for u in range(4):
        a(f"s_waitcnt vmcnt({kw[u]})")
        DD = [24, 28, 56, 60]
        for tt in range(2):
            t = 2*u + tt
            for hb in range(2):
                d = DD[2*tt+hb]
                for ln in range(2):
                    q = KB + ((t&3)*4 + hb*2 + ln)*4
                    c = "0" if ln == 0 else f"v[{d}:{d+3}]"
                    a(f"v_mfma_f32_16x16x32_bf16 v[{d}:{d+3}], v[{q}:{q+3}], v[{16+4*ln}:{19+4*ln}], {c}")
        a("s_nop 7")
        if u < 2:
            issue_k(2*u+4); issue_k(2*u+5)
        else:
            a("s_nop 3")
        for tt in range(2):
            for r in range(4):
                a(f"v_permlane32_swap_b32 v{DD[2*tt]+r}, v{DD[2*tt+1]+r}")
        a("s_nop 1")
        for tt in range(2):
            for r in range(4):
                a(f"v_add_f32_dpp v{S+4*tt+r}, v{DD[2*tt+1]+r}, v{DD[2*tt]+r} row_shl:4 row_mask:0xf bank_mask:0xf bound_ctrl:1")
        for k in range(0, 8, 2):
            a(f"v_cvt_pk_bf16_f32 v{T0}, v{S+k}, v{S+k+1}")
            a(f"v_lshlrev_b32 v{S+k}, 16, v{T0}")
            a(f"v_and_b32 v{S+k+1}, s42, v{T0}")
            a(f"v_mul_f32 v{S+k}, s41, v{S+k}")
            a(f"v_mul_f32 v{S+k+1}, s41, v{S+k+1}")
            a(f"v_cvt_pk_bf16_f32 v{T0}, v{S+k}, v{S+k+1}")
            a(f"v_lshlrev_b32 v{S+k}, 16, v{T0}")
            a(f"v_and_b32 v{S+k+1}, s42, v{T0}")
        a(f"v_max3_f32 v{T0}, v{S}, v{S+1}, v{S+2}")
        a(f"v_max3_f32 v{T0}, v{T0}, v{S+3}, v{S+4}")
        a(f"v_max3_f32 v{T0}, v{T0}, v{S+5}, v{S+6}")
        a(f"v_max_f32 v{T0}, v{T0}, v{S+7}")
        a(f"v_mov_b32 v{T1}, v{T0}")
        a("s_nop 1")
        a(f"v_permlane32_swap_b32 v{T0}, v{T1}")
        a("s_nop 1")
        a(f"v_max_f32 v{T0}, v{T0}, v{T1}")
        a(f"v_mov_b32 v{T1}, v{T0}")
        a("s_nop 1")
        a(f"v_permlane16_swap_b32 v{T0}, v{T1}")
        a("s_nop 1")
        a(f"v_max_f32 v{T0}, v{T0}, v{T1}")
        if u == 0:
            a(f"v_mov_b32 v{M}, v{T0}")
        else:
            a(f"v_max_f32 v{T0}, v{T0}, v{M}")
            a(f"v_sub_f32 v{AL}, v{M}, v{T0}")
            a(f"v_mul_f32 v{AL}, s40, v{AL}")
            a(f"v_exp_f32 v{AL}, v{AL}")
            a(f"v_mov_b32 v{M}, v{T0}")
        for k in range(8):
            a(f"v_sub_f32 v{S+k}, v{S+k}, v{M}")
        for k in range(8):
            a(f"v_mul_f32 v{S+k}, s40, v{S+k}")
        for k in range(8):
            a(f"v_exp_f32 v{S+k}, v{S+k}")
        a("s_nop 0")
        if u == 0:
            a(f"v_add_f32 v{L}, v{S}, v{S+1}")
            ks = 2
        else:
            a(f"v_fma_f32 v{L}, v{L}, v{AL}, v{S}")
            ks = 1
            for k in range(32):
                a(f"v_mul_f32 v{O+k}, v{O+k}, v{AL}")
        for k in range(ks, 8):
            a(f"v_add_f32 v{L}, v{L}, v{S+k}")
        for k in range(4):
            a(f"v_cvt_pk_bf16_f32 v{P+k}, v{S+2*k}, v{S+2*k+1}")
        a(f"s_waitcnt vmcnt({vw[u]})")
        vo = (u & 1) * 8192
        for th in range(2):
            for t4 in range(4):
                t = th*4 + t4
                a(f"ds_read_b64_tr_b16 v[{VF+4*t4}:{VF+4*t4+1}], v{40+t} offset:{vo}")
                a(f"ds_read_b64_tr_b16 v[{VF+4*t4+2}:{VF+4*t4+3}], v{40+t} offset:{vo+4096}")
            for t4 in range(4):
                t = th*4 + t4
                a(f"s_waitcnt lgkmcnt({6-2*t4})")
                c = "0" if u == 0 else f"v[{O+4*t}:{O+4*t+3}]"
                a(f"v_mfma_f32_16x16x32_bf16 v[{O+4*t}:{O+4*t+3}], v[{VF+4*t4}:{VF+4*t4+3}], v[{P}:{P+3}], {c}")
            if th == 0: a("s_nop 7")
        if u < 2:
            issue_v(2*u+4); issue_v(2*u+5)
        a("s_nop 7")
    a("s_nop 3")
    a(f"v_mov_b32 v{T1}, v{L}")
    a("s_nop 1")
    a(f"v_permlane32_swap_b32 v{L}, v{T1}")
    a("s_nop 1")
    a(f"v_add_f32 v{L}, v{L}, v{T1}")
    a(f"v_mov_b32 v{T1}, v{L}")
    a("s_nop 1")
    a(f"v_permlane16_swap_b32 v{L}, v{T1}")
    a("s_nop 1")
    a(f"v_add_f32 v{L}, v{L}, v{T1}")

def gen_k2(NT=" nt", dbg=False):
    a = A(); name = PFX + "_k2_kernel"
    kstart(a, name)
    a("s_cmp_ge_u32 s2, 256")
    a("s_cbranch_scc1 K2_END")
    a("s_load_dwordx4 s[4:7], s[0:1], 8")
    a("s_load_dwordx2 s[10:11], s[0:1], 96")
    a("v_lshrrev_b32 v1, 6, v0")
    a("v_and_b32 v2, 63, v0")
    a("v_readfirstlane_b32 s20, v1")
    a("v_lshrrev_b32 v3, 4, v2")
    a("v_and_b32 v4, 15, v2")
    a("s_lshl_b32 s21, s2, 18")
    a("s_lshl_b32 s22, s20, 15")
    a("s_add_u32 s21, s21, s22")
    a("s_lshl_b32 s23, s20, 14")
    a("s_waitcnt lgkmcnt(0)")
    srd(a, 12, 4, 0x4000000)
    srd(a, 16, 6, 0x4000000)
    srd(a, 24, 10, WS_SIZE)
    stamp(a, 0, dbg)
    a("s_lshr_b32 s32, s2, 6")
    a("s_lshl_b32 s32, s32, 14")
    a("s_lshr_b32 s33, s2, 3")
    a("s_and_b32 s33, s33, 7")
    a("s_lshl_b32 s33, s33, 11")
    a("s_add_u32 s32, s32, s33")
    a("v_lshlrev_b32 v9, 2, v0")
    for kb in range(4):
        a(f"s_add_u32 s34, s32, {QP + kb*65536}")
        a(f"buffer_load_dword v{16+kb}, v9, s[24:27], s34 offen")
    def qwait():
        a("s_waitcnt vmcnt(32)")
        a("v_add_f32 v16, v16, v17")
        a("v_add_f32 v18, v18, v19")
        a("v_add_f32 v16, v16, v18")
        a("v_cvt_pk_bf16_f32 v16, v16, v16")
        a("v_lshlrev_b32 v9, 1, v0")
        a(f"v_add_u32 v9, {QL}, v9")
        a("ds_write_b16 v9, v16")
        a("s_waitcnt lgkmcnt(0)")
        a("s_barrier")
    attention_core(a, NT, dbg, qwait)
    O = 128; M, L = 10, 11
    a("v_lshlrev_b32 v5, 9, v4")
    a("v_lshl_add_u32 v5, v3, 4, v5")
    a("v_add_u32 v5, s23, v5")
    a("v_lshlrev_b32 v6, 3, v4")
    a("v_add_u32 v6, s23, v6")
    a("v_cmp_gt_u32 vcc, 4, v4")
    a("s_and_saveexec_b64 s[36:37], vcc")
    for t in range(8):
        a(f"ds_write_b128 v5, v[{O+4*t}:{O+4*t+3}] offset:{t*64}")
    a(f"ds_write_b64 v6, v[{M}:{L}] offset:2048")
    a("s_mov_b64 exec, s[36:37]")
    stamp(a, 2, dbg)
    a("s_waitcnt lgkmcnt(0)")
    a("s_barrier")
    a("v_lshrrev_b32 v5, 7, v0")
    a("v_lshlrev_b32 v5, 3, v5")
    a("v_lshlrev_b32 v6, 2, v0")
    a("v_add_u32 v7, 0x10000, v5")
    a("v_add_u32 v8, 0x10000, v6")
    for w in range(8):
        a(f"ds_read_b64 v[{16+2*w}:{17+2*w}], v{5 if w<4 else 7} offset:{(w&3)*16384+2048}")
        a(f"ds_read_b32 v{32+w}, v{6 if w<4 else 8} offset:{(w&3)*16384}")
    a("s_waitcnt lgkmcnt(0)")
    merge(a)
    a("s_lshl_b32 s34, s2, 12")
    a(f"s_add_u32 s34, s34, {PWS}")
    a("buffer_store_dword v12, v6, s[24:27], s34 offen")
    a("v_and_b32 v7, 127, v0")
    a("v_cmp_eq_u32 vcc, 0, v7")
    a("s_and_saveexec_b64 s[36:37], vcc")
    a("buffer_store_dwordx2 v[10:11], v5, s[24:27], s34 offen offset:2048")
    a("s_mov_b64 exec, s[36:37]")
    stamp(a, 3, dbg)
    a.lab("K2_END")
    a("s_endpgm")
    return a.txt(), kd(name, 160), name

def main(out, dbg=False):
    k1, d1, n1 = gen_k1()
    k2, d2, n2 = gen_k2(" nt", dbg)
    k3, d3, n3 = gen_k3(dbg)
    s = f"""; generated by gen6.py
; @launch kernel={n1} grid=(480,1,1) block=(64,1,1) lds=16384
; @launch kernel={n2} grid=(256,1,1) block=(512,1,1) lds=132096
; @launch kernel={n3} grid=(368,1,1) block=(512,1,1) lds=18688
.amdgcn_target "amdgcn-amd-amdhsa--gfx950"
.text
"""
    s += k1 + k2 + k3
    s += '.section .rodata,"a"\n' + d1 + d2 + d3
    open(out, "w").write(s)
if __name__ == "__main__":
    main(sys.argv[1], len(sys.argv) > 2 and sys.argv[2] == "dbg")
```

```python
import sys, struct
from gen1 import A, srd, kd, kstart, rbf, sigmoid, f2u, PFX, WS_SIZE
from gen2 import merge, LOG2E, SCALE
import gen4, gen6
from gen4 import QP, GP, UP, ACC, CNT, PWS, STW, stamp, gen_k3
SCB = 0x20000
QL  = 0x24000
LDS_F = 0x24400
SCA = 0

def block_task(a, sc, sc1):
    a("v_lshrrev_b32 v6, 3, v2")
    a("v_and_b32 v7, 7, v2")
    a("v_and_b32 v5, 3, v2")
    a("v_mul_lo_u32 v8, v6, s34")
    a("v_lshl_add_u32 v8, v7, 4, v8")
    a("s_lshl_b32 s38, s34, 3")
    for i in range(16):
        a(f"buffer_load_dwordx4 v[{32+4*i}:{35+4*i}], v8, s[44:47], s37 offen nt")
        if i < 15: a("s_add_u32 s37, s37, s38")
    a("v_lshlrev_b32 v9, 10, v5")
    a("v_lshl_add_u32 v9, v3, 4, v9")
    for j in range(4):
        a(f"buffer_load_dwordx4 v[{16+4*j}:{19+4*j}], v9, s[28:31], s39 offen offset:{j*64}")
    a("v_lshlrev_b32 v10, 4, v2")
    a(f"v_add_u32 v10, {sc}, v10")
    a("v_lshrrev_b32 v11, 2, v4")
    a("v_lshl_add_u32 v11, v3, 3, v11")
    a("v_lshlrev_b32 v11, 7, v11")
    a("v_lshl_add_u32 v11, v5, 3, v11")
    a(f"v_add_u32 v11, {sc}, v11")
    a("s_waitcnt vmcnt(0)")
    for i in range(16):
        a(f"ds_write_b128 v10, v[{32+4*i}:{35+4*i}] offset:{i*1024}")
    a("s_waitcnt lgkmcnt(0)")
    for nt in range(4):
        for j in range(4):
            q = 32 + 4*(nt*4+j)
            a(f"ds_read_b64_tr_b16 v[{q}:{q+1}], v11 offset:{j*4096+nt*32}")
            a(f"ds_read_b64_tr_b16 v[{q+2}:{q+3}], v11 offset:{j*4096+nt*32+512}")
    a("s_waitcnt lgkmcnt(0)")
    for nt in range(4):
        for j in range(4):
            q = 32 + 4*(nt*4+j)
            c = "0" if j == 0 else f"v[{96+4*nt}:{99+4*nt}]"
            a(f"v_mfma_f32_16x16x32_bf16 v[{96+4*nt}:{99+4*nt}], v[{q}:{q+3}], v[{16+4*j}:{19+4*j}], {c}")
    a("v_mul_lo_u32 v12, v4, s36")
    a("v_lshl_add_u32 v12, v3, 4, v12")
    a("v_cmp_gt_u32 vcc, 4, v4")
    a("s_and_saveexec_b64 s[42:43], vcc")
    a("s_nop 7")
    for nt in range(4):
        a(f"buffer_store_dwordx4 v[{96+4*nt}:{99+4*nt}], v12, s[24:27], s40 offen offset:{nt*64}{sc1}")
    a("s_mov_b64 exec, s[42:43]")

def gen_f(NT=" nt", dbg=False, B1M=0, D0=64, PRE=0, QAT=32):
    a = A(); name = PFX + "_f_kernel"
    kstart(a, name)
    a("s_cmp_ge_u32 s2, 256")
    a("s_cbranch_scc1 F_END")
    a("s_load_dwordx4 s[4:7], s[0:1], 8")
    a("s_load_dwordx4 s[8:11], s[0:1], 88")
    a("s_load_dwordx2 s[50:51], s[0:1], 0")
    a("s_load_dwordx2 s[52:53], s[0:1], 24")
    a("s_load_dwordx4 s[56:59], s[0:1], 48")
    a("v_lshrrev_b32 v1, 6, v0")
    a("v_and_b32 v2, 63, v0")
    a("v_readfirstlane_b32 s20, v1")
    a("v_lshrrev_b32 v3, 4, v2")
    a("v_and_b32 v4, 15, v2")
    a("s_lshr_b32 s32, s2, 6")
    a("s_lshr_b32 s33, s2, 3")
    a("s_and_b32 s33, s33, 7")
    a("s_waitcnt lgkmcnt(0)")
    srd(a, 24, 10, WS_SIZE)
    a("s_cmp_ge_u32 s20, 8")
    a("s_cbranch_scc1 F_AUX")
    a("s_lshr_b32 s22, s2, 3")
    a("s_xor_b32 s21, s2, s22")
    a("s_and_b32 s21, s21, 7")
    a("s_lshl_b32 s21, s21, 18")
    a("s_lshl_b32 s22, s22, 21")
    a("s_add_u32 s21, s21, s22")
    a("s_lshl_b32 s22, s20, 15")
    a("s_add_u32 s21, s21, s22")
    a("s_lshl_b32 s23, s20, 14")
    srd(a, 12, 4, 0x4000000)
    srd(a, 16, 6, 0x4000000)
    stamp(a, 0, dbg)
    def qwait():
        a("s_barrier")
        stamp(a, 1, dbg)
    gen6.QL = QL
    core = A()
    gen6.attention_core(core, NT, dbg, lambda: (core("s_barrier"), stamp(core, 1, dbg)), D0, PRE, QAT)
    txt = core.txt()
    a.l.append(txt.rstrip("\n"))
    O = 128; M, L = 10, 11
    a("v_lshlrev_b32 v5, 9, v4")
    a("v_lshl_add_u32 v5, v3, 4, v5")
    a("v_add_u32 v5, s23, v5")
    a("v_lshlrev_b32 v6, 3, v4")
    a("v_add_u32 v6, s23, v6")
    a("v_cmp_gt_u32 vcc, 4, v4")
    a("s_and_saveexec_b64 s[36:37], vcc")
    for t in range(8):
        a(f"ds_write_b128 v5, v[{O+4*t}:{O+4*t+3}] offset:{t*64}")
    a(f"ds_write_b64 v6, v[{M}:{L}] offset:2048")
    a("s_mov_b64 exec, s[36:37]")
    stamp(a, 2, dbg)
    a("s_waitcnt lgkmcnt(0)")
    a("s_barrier")
    a("v_lshrrev_b32 v5, 7, v0")
    a("v_lshlrev_b32 v5, 3, v5")
    a("v_lshlrev_b32 v6, 2, v0")
    a("v_add_u32 v7, 0x10000, v5")
    a("v_add_u32 v8, 0x10000, v6")
    for w in range(8):
        a(f"ds_read_b64 v[{16+2*w}:{17+2*w}], v{5 if w<4 else 7} offset:{(w&3)*16384+2048}")
        a(f"ds_read_b32 v{32+w}, v{6 if w<4 else 8} offset:{(w&3)*16384}")
    a("s_waitcnt lgkmcnt(0)")
    merge(a)
    a("s_lshl_b32 s34, s2, 12")
    a(f"s_add_u32 s34, s34, {PWS}")
    a("buffer_store_dword v12, v6, s[24:27], s34 offen")
    a("v_and_b32 v7, 127, v0")
    a("v_cmp_eq_u32 vcc, 0, v7")
    a("s_and_saveexec_b64 s[36:37], vcc")
    a("buffer_store_dwordx2 v[10:11], v5, s[24:27], s34 offen offset:2048")
    a("s_mov_b64 exec, s[36:37]")
    stamp(a, 3, dbg)
    a("s_endpgm")
    a.lab("F_AUX")
    srd(a, 28, 50, 4096)
    a("s_cmp_eq_u32 s20, 9")
    a("s_cbranch_scc1 F_AUXB")
    stamp(a, 0, dbg)
    if dbg:
        a("s_getreg_b32 s60, hwreg(HW_REG_XCC_ID)")
        a("v_mov_b32 v15, s60")
        a("buffer_store_dword v15, v14, s[24:27], s62 offen offset:16")
    srd(a, 44, 52, 512*8192)
    srd(a, 72, 8, 256)
    a("s_movk_i32 s34, 0x2000")
    a("s_mov_b32 s36, 0x4000")
    a("s_and_b32 s35, s2, 63")
    a("s_lshl_b32 s37, s32, 20")
    a("s_lshl_b32 s38, s35, 7")
    a("s_add_u32 s37, s37, s38")
    a("s_lshl_b32 s39, s32, 8")
    a("s_lshl_b32 s40, s32, 16")
    a("s_lshl_b32 s38, s35, 8")
    a("s_add_u32 s40, s40, s38")
    a(f"s_add_u32 s40, s40, {QP}")
    block_task(a, SCA, " sc1")
    if B1M == 2: a("s_barrier")
    a("s_waitcnt vmcnt(0)")
    stamp(a, 1, dbg)
    a("s_lshl_b32 s49, s33, 5")
    a("v_mov_b32 v14, 0")
    a("v_mov_b32 v15, 1")
    a("v_cmp_eq_u32 vcc, 0, v2")
    a("s_and_saveexec_b64 s[42:43], vcc")
    a("buffer_atomic_add v15, v14, s[72:75], s49 offen sc0 sc1")
    if B1M == 1: a("s_barrier")
    a("s_waitcnt vmcnt(0)")
    a("v_readfirstlane_b32 s54, v15")
    a("s_add_u32 s54, s54, 1")
    if B1M == 0: a("s_barrier")
    a("s_cmp_ge_u32 s54, 32")
    a("s_cbranch_scc1 F_GOTQ")
    a.lab("F_POLL")
    a("s_sleep 8")
    a("buffer_load_dword v15, v14, s[72:75], s49 offen sc1")
    a("s_waitcnt vmcnt(0)")
    a("v_readfirstlane_b32 s54, v15")
    a("s_cmp_lt_u32 s54, 32")
    a("s_cbranch_scc1 F_POLL")
    a.lab("F_GOTQ")
    a("s_mov_b64 exec, s[42:43]")
    stamp(a, 2, dbg)
    a("s_lshl_b32 s49, s32, 14")
    a("s_lshl_b32 s54, s33, 11")
    a("s_add_u32 s49, s49, s54")
    a("v_lshlrev_b32 v14, 5, v2")
    for kb in range(4):
        a(f"s_add_u32 s54, s49, {QP+kb*65536}")
        a(f"buffer_load_dwordx4 v[{16+8*kb}:{19+8*kb}], v14, s[24:27], s54 offen sc1")
        a(f"buffer_load_dwordx4 v[{20+8*kb}:{23+8*kb}], v14, s[24:27], s54 offen offset:16 sc1")
    a("s_cmp_ge_u32 s2, 68")
    a("s_cbranch_scc1 F_NZ")
    a("s_lshl_b32 s49, s2, 8")
    a(f"s_add_u32 s49, s49, {ACC}")
    a("v_lshlrev_b32 v12, 2, v2")
    a("v_mov_b32 v13, 0")
    a("s_waitcnt vmcnt(0)")
    a("buffer_store_dword v13, v12, s[24:27], s49 offen")
    a("s_branch F_NZ2")
    a.lab("F_NZ")
    a("s_waitcnt vmcnt(0)")
    a.lab("F_NZ2")
    a("v_lshlrev_b32 v14, 4, v2")
    a(f"v_add_u32 v14, {QL}, v14")
    for k in range(8):
        a(f"v_add_f32 v{16+k}, v{16+k}, v{24+k}")
        a(f"v_add_f32 v{32+k}, v{32+k}, v{40+k}")
    for k in range(8):
        a(f"v_add_f32 v{16+k}, v{16+k}, v{32+k}")
    for k in range(4):
        a(f"v_cvt_pk_bf16_f32 v{16+k}, v{16+2*k}, v{17+2*k}")
    a("ds_write_b128 v14, v[16:19]")
    a("s_waitcnt lgkmcnt(0)")
    stamp(a, 3, dbg)
    a("s_barrier")
    a("s_endpgm")
    a.lab("F_AUXB")
    a("s_cmp_ge_u32 s2, 224")
    a("s_cbranch_scc1 F_END")
    a("s_and_b32 s48, s2, 3")
    a("s_lshr_b32 s35, s2, 2")
    a(f"s_mov_b32 s40, {GP}")
    a("s_mov_b32 s44, s56")
    a("s_mov_b32 s45, s57")
    a("s_cmp_lt_u32 s35, 28")
    a("s_cbranch_scc1 F_G")
    a("s_sub_u32 s35, s35, 28")
    a(f"s_mov_b32 s40, {UP}")
    a("s_mov_b32 s44, s58")
    a("s_mov_b32 s45, s59")
    a.lab("F_G")
    a("s_and_b32 s45, s45, 0xffff")
    a(f"s_mov_b32 s46, {512*3584}")
    a("s_mov_b32 s47, 0x00020000")
    a("s_movk_i32 s34, 3584")
    a("s_movk_i32 s36, 7168")
    a(f"s_mul_i32 s37, s48, {128*3584}")
    a("s_lshl_b32 s38, s35, 7")
    a("s_add_u32 s37, s37, s38")
    a("s_lshl_b32 s39, s48, 8")
    a(f"s_mul_i32 s38, s48, {4*7168}")
    a("s_add_u32 s40, s40, s38")
    a("s_lshl_b32 s38, s35, 8")
    a("s_add_u32 s40, s40, s38")
    block_task(a, SCB, "")
    a.lab("F_END")
    a("s_endpgm")
    return a.txt(), kd(name, 168), name

def main(out, dbg=False, early=True, D0=64, PRE=0, QAT=32):
    k2, d2, n2 = gen_f(" nt", dbg, early, D0, PRE, QAT)
    k3, d3, n3 = gen_k3(dbg)
    s = f"""; generated by gen7.py
; @launch kernel={n2} grid=(256,1,1) block=(640,1,1) lds={LDS_F}
; @launch kernel={n3} grid=(368,1,1) block=(512,1,1) lds=18688
.amdgcn_target "amdgcn-amd-amdhsa--gfx950"
.text
"""
    s += k2 + k3
    s += '.section .rodata,"a"\n' + d2 + d3
    open(out, "w").write(s)
if __name__ == "__main__":
    main(sys.argv[1], sys.argv[2] == "dbg", int(sys.argv[3]), int(sys.argv[4]), int(sys.argv[5]), int(sys.argv[6]))
```

```python
import sys, struct
from gen1 import A, srd, kd, kstart, rbf, sigmoid, f2u, PFX, WS_SIZE
from gen2 import merge, LOG2E, SCALE
import gen4, gen6, gen7
from gen4 import QP, GP, UP, PWS, STW, stamp
DPART = 0x80000
SPIN = 200000

def gen_f(dbg, B1M, D0, QAT):
    txt, d, name = gen7.gen_f(" nt", dbg, B1M, D0, 0, QAT)
    i0 = txt.index("  s_cmp_ge_u32 s2, 68\n")
    i1 = txt.index("F_NZ2:\n")
    txt = txt[:i0] + "  s_waitcnt vmcnt(0)\n" + txt[i1+len("F_NZ2:\n"):]
    a = A()
    a("s_cmp_ge_u32 s20, 2")
    a("s_cbranch_scc1 F_NI")
    a("v_mov_b32 v12, -1")
    a("v_mov_b32 v13, -1")
    a("v_mov_b32 v14, -1")
    a("v_mov_b32 v15, -1")
    a("v_lshlrev_b32 v5, 4, v2")
    a("s_cmp_eq_u32 s20, 1")
    a("s_cbranch_scc1 F_I1")
    a("s_lshr_b32 s41, s2, 5")
    a("s_mul_i32 s41, s41, 46")
    a("s_and_b32 s42, s2, 31")
    a("s_add_u32 s41, s41, s42")
    a("s_branch F_IS")
    a.lab("F_I1")
    a("s_cmp_ge_u32 s2, 112")
    a("s_cbranch_scc1 F_NI")
    a("s_and_b32 s41, s2, 7")
    a("s_mul_i32 s41, s41, 46")
    a("s_lshr_b32 s42, s2, 3")
    a("s_add_u32 s41, s41, s42")
    a("s_add_u32 s41, s41, 32")
    a.lab("F_IS")
    a("s_lshl_b32 s41, s41, 10")
    a(f"s_add_u32 s41, s41, {DPART}")
    a("buffer_store_dwordx4 v[12:15], v5, s[24:27], s41 offen")
    a("s_nop 1")
    a.lab("F_NI")
    key = "  v_and_b32 v5, 7, v4\n  v_lshlrev_b32 v5, 8, v5\n"
    assert txt.count(key) == 1
    txt = txt.replace(key, a.txt() + key)
    old = "F_POLL:\n  s_sleep 8\n  buffer_load_dword v15, v14, s[72:75], s49 offen sc1\n  s_waitcnt vmcnt(0)\n  v_readfirstlane_b32 s54, v15\n  s_cmp_lt_u32 s54, 32\n  s_cbranch_scc1 F_POLL\n"
    assert old in txt
    new = f"  s_mov_b32 s55, {SPIN}\nF_POLL:\n  s_sleep 8\n  buffer_load_dword v15, v14, s[72:75], s49 offen sc1\n  s_waitcnt vmcnt(0)\n  v_readfirstlane_b32 s54, v15\n  s_sub_u32 s55, s55, 1\n  s_cmp_eq_u32 s55, 0\n  s_cbranch_scc1 F_GOTQ\n  s_cmp_lt_u32 s54, 32\n  s_cbranch_scc1 F_POLL\n"
    txt = txt.replace(old, new)
    return txt, d, name

def gen_k3():
    WOL, AOP = 0, 16384
    a = A(); name = PFX + "_k3_kernel"
    kstart(a, name)
    a("s_cmp_ge_u32 s2, 368")
    a("s_cbranch_scc1 K3_END")
    a("s_load_dwordx2 s[4:5], s[0:1], 0")
    a("s_load_dwordx2 s[6:7], s[0:1], 32")
    a("s_load_dwordx4 s[8:11], s[0:1], 64")
    a("s_load_dwordx2 s[12:13], s[0:1], 80")
    a("s_load_dwordx2 s[14:15], s[0:1], 96")
    a("v_lshrrev_b32 v1, 6, v0")
    a("v_and_b32 v2, 63, v0")
    a("v_readfirstlane_b32 s44, v1")
    a("v_lshrrev_b32 v3, 4, v2")
    a("v_and_b32 v4, 3, v2")
    a(f"s_mov_b32 s40, {f2u(LOG2E)}")
    a("v_lshrrev_b32 v5, 3, v2")
    a("v_lshlrev_b32 v5, 10, v5")
    a("v_and_b32 v6, 7, v2")
    a("v_lshl_add_u32 v5, v6, 4, v5")
    a("s_waitcnt lgkmcnt(0)")
    srd(a, 36, 14, WS_SIZE)
    a("s_cmp_ge_u32 s2, 256")
    a("s_cbranch_scc1 K3_DOWN")
    srd(a, 20, 6, 4096*1024)
    a("s_and_b32 s45, s2, 31")
    a("s_lshr_b32 s46, s2, 5")
    a("s_mov_b32 s47, s45")
    def wload():
        a("s_lshl_b32 s48, s45, 17")
        a("s_lshl_b32 s49, s46, 7")
        a("s_add_u32 s48, s48, s49")
        a("s_lshl_b32 s49, s44, 14")
        a("s_add_u32 s48, s48, s49")
        a("s_lshl_b32 s49, s44, 11")
        for i in range(2):
            a(f"s_add_u32 m0, s49, {WOL+i*1024}")
            a(f"s_add_u32 s50, s48, {i*8192}")
            a(f"buffer_load_dwordx4 v5, s[20:23], s50 offen nt lds")
    wload()
    a("v_lshrrev_b32 v7, 7, v0")
    a("v_lshlrev_b32 v7, 18, v7")
    a("v_and_b32 v8, 127, v0")
    a("v_lshl_add_u32 v8, v8, 2, v7")
    a("s_lshr_b32 s50, s45, 2")
    a("s_lshl_b32 s50, s50, 15")
    a(f"s_add_u32 s50, s50, {PWS}")
    a("s_and_b32 s51, s45, 3")
    a("s_lshl_b32 s52, s51, 9")
    a("s_add_u32 s52, s52, s50")
    a("s_lshl_b32 s53, s51, 3")
    a("s_add_u32 s53, s53, s50")
    for s in range(8):
        a(f"s_add_u32 s54, s52, {s*4096}")
        a(f"s_add_u32 s55, s53, {s*4096}")
        a(f"buffer_load_dword v{32+s}, v8, s[36:39], s54 offen")
        a(f"buffer_load_dwordx2 v[{16+2*s}:{17+2*s}], v7, s[36:39], s55 offen offset:2048")
    a("s_waitcnt vmcnt(0)")
    merge(a)
    a("v_rcp_f32 v11, v11")
    a("s_nop 0")
    a("v_mul_f32 v12, v12, v11")
    a("s_branch K3_A")
    a.lab("K3_DOWN")
    srd(a, 20, 8, 1792*1024)
    a("s_sub_u32 s45, s2, 256")
    a("s_and_b32 s46, s45, 7")
    a("s_lshr_b32 s45, s45, 3")
    a("s_add_u32 s47, s45, 32")
    wload()
    a("v_lshrrev_b32 v7, 7, v0")
    a("v_mul_u32_u24 v7, 7168, v7")
    a("v_and_b32 v8, 127, v0")
    a("v_lshl_add_u32 v8, v8, 2, v7")
    a("s_lshl_b32 s50, s45, 9")
    for kq in range(4):
        a(f"s_add_u32 s54, s50, {GP+kq*28672}")
        a(f"s_add_u32 s55, s50, {UP+kq*28672}")
        a(f"buffer_load_dword v{16+kq}, v8, s[36:39], s54 offen")
        a(f"buffer_load_dword v{20+kq}, v8, s[36:39], s55 offen")
    a("s_waitcnt vmcnt(0)")
    a("v_add_f32 v16, v16, v17")
    a("v_add_f32 v18, v18, v19")
    a("v_add_f32 v20, v20, v21")
    a("v_add_f32 v22, v22, v23")
    a("v_add_f32 v16, v16, v18")
    a("v_add_f32 v20, v20, v22")
    rbf(a, 16); rbf(a, 20)
    sigmoid(a, 16, 17)
    rbf(a, 16)
    a("v_mul_f32 v12, v16, v20")
    a.lab("K3_A")
    a("v_cvt_pk_bf16_f32 v12, v12, v12")
    a("v_lshlrev_b32 v9, 1, v0")
    a(f"ds_write_b16 v9, v12 offset:{AOP}")
    a("s_waitcnt lgkmcnt(0)")
    a("s_barrier")
    a("s_cmp_ge_u32 s44, 4")
    a("s_cbranch_scc1 K3_FIN")
    a("v_lshlrev_b32 v9, 8, v4")
    a("v_lshl_add_u32 v9, v3, 4, v9")
    for j in range(4):
        a(f"ds_read_b128 v[{64+4*j}:{67+4*j}], v9 offset:{AOP+j*64}")
    a("v_and_b32 v7, 15, v2")
    a("v_lshrrev_b32 v6, 2, v7")
    a("v_lshl_add_u32 v6, v3, 3, v6")
    a("v_lshlrev_b32 v6, 7, v6")
    a("v_lshl_add_u32 v6, v4, 3, v6")
    a("s_lshl_b32 s50, s44, 5")
    a("v_add_u32 v6, s50, v6")
    for j in range(4):
        a(f"ds_read_b64_tr_b16 v[{80+4*j}:{81+4*j}], v6 offset:{WOL+j*4096}")
        a(f"ds_read_b64_tr_b16 v[{82+4*j}:{83+4*j}], v6 offset:{WOL+j*4096+512}")
    a("s_waitcnt lgkmcnt(0)")
    for j in range(4):
        c = "0" if j == 0 else "v[16:19]"
        a(f"v_mfma_f32_16x16x32_bf16 v[16:19], v[{80+4*j}:{83+4*j}], v[{64+4*j}:{67+4*j}], {c}")
    a("s_mul_i32 s50, s46, 46")
    a("s_add_u32 s50, s50, s47")
    a("s_lshl_b32 s50, s50, 10")
    a("s_lshl_b32 s51, s44, 6")
    a("s_add_u32 s50, s50, s51")
    a(f"s_add_u32 s50, s50, {DPART}")
    a("v_lshlrev_b32 v9, 8, v7")
    a("v_lshl_add_u32 v9, v3, 4, v9")
    a("v_cmp_gt_u32 vcc, 4, v7")
    a("s_and_saveexec_b64 s[56:57], vcc")
    a("s_nop 7")
    a("buffer_store_dwordx4 v[16:19], v9, s[36:39], s50 offen sc1")
    a("s_endpgm")
    a.lab("K3_FIN")
    a("s_cmp_lg_u32 s44, 4")
    a("s_cbranch_scc1 K3_END")
    a("s_cmp_ge_u32 s47, 4")
    a("s_cbranch_scc1 K3_END")
    srd(a, 16, 4, 4096)
    srd(a, 28, 10, 1024)
    srd(a, 32, 12, 4096)
    a("v_lshlrev_b32 v10, 4, v2")
    a("s_lshl_b32 s51, s47, 10")
    a("buffer_load_dwordx4 v[64:67], v10, s[16:19], s51 offen")
    a("buffer_load_dwordx4 v[68:71], v10, s[28:31], 0 offen")
    a("s_mul_i32 s50, s46, 46*1024")
    a("s_lshl_b32 s52, s47, 8")
    a("s_add_u32 s50, s50, s52")
    a(f"s_add_u32 s50, s50, {DPART}")
    a("v_lshlrev_b32 v9, 2, v2")
    a("s_waitcnt vmcnt(0)")
    a("v_mov_b32 v12, 0")
    for k in range(4):
        a(f"v_lshlrev_b32 v13, 16, v{64+k}")
        a(f"v_lshlrev_b32 v14, 16, v{68+k}")
        a("v_mul_f32 v13, v13, v14")
        rbf(a, 13)
        a("v_add_f32 v12, v12, v13")
        a(f"v_and_b32 v13, 0xffff0000, v{64+k}")
        a(f"v_and_b32 v14, 0xffff0000, v{68+k}")
        a("v_mul_f32 v13, v13, v14")
        rbf(a, 13)
        a("v_add_f32 v12, v12, v13")
    for sh in (8, 4, 2, 1):
        a("s_nop 1")
        a(f"v_add_f32_dpp v12, v12, v12 row_ror:{sh} row_mask:0xf bank_mask:0xf")
    a("v_mov_b32 v13, v12")
    a("s_nop 1")
    a("v_permlane32_swap_b32 v12, v13")
    a("s_nop 1")
    a("v_add_f32 v12, v12, v13")
    a("v_mov_b32 v13, v12")
    a("s_nop 1")
    a("v_permlane16_swap_b32 v12, v13")
    a("s_nop 1")
    a("v_add_f32 v12, v12, v13")
    rbf(a, 12)
    sigmoid(a, 12, 13)
    rbf(a, 12)
    a("v_sub_f32 v13, 1.0, v12")
    rbf(a, 13)
    a(f"s_mov_b32 s53, {SPIN}")
    a.lab("K3_LD")
    for src in range(46):
        if (src & 3) == 0: a(f"s_add_u32 s52, s50, {src*1024}")
        a(f"buffer_load_dword v{64+src}, v9, s[36:39], s52 offen offset:{(src&3)*1024} sc1")
    a("s_waitcnt vmcnt(0)")
    a("v_max3_u32 v14, v64, v65, v66")
    for k in range(67, 109, 2):
        a(f"v_max3_u32 v14, v14, v{k}, v{k+1}")
    a("v_max_u32 v14, v14, v109")
    a("v_cmp_eq_u32 vcc, -1, v14")
    a("s_cbranch_vccz K3_LDD")
    a("s_sub_u32 s53, s53, 1")
    a("s_cmp_eq_u32 s53, 0")
    a("s_cbranch_scc1 K3_LDD")
    a("s_branch K3_LD")
    a.lab("K3_LDD")
    for st in (16, 8, 4, 2, 1):
        for k in range(st):
            a(f"v_add_f32 v{64+k}, v{64+k}, v{64+k+st}")
    for k in range(7):
        a(f"v_add_f32 v{96+k}, v{96+k}, v{103+k}")
    a("v_add_f32 v96, v96, v97")
    a("v_add_f32 v98, v98, v99")
    a("v_add_f32 v100, v100, v101")
    a("v_add_f32 v96, v96, v98")
    a("v_add_f32 v100, v100, v102")
    a("v_add_f32 v96, v96, v100")
    rbf(a, 64); rbf(a, 96)
    a("v_mul_f32 v64, v12, v64")
    rbf(a, 64)
    a("v_mul_f32 v96, v13, v96")
    rbf(a, 96)
    a("v_add_f32 v64, v64, v96")
    a("v_cvt_pk_bf16_f32 v64, v64, v64")
    a("v_lshlrev_b32 v10, 1, v2")
    a("s_lshl_b32 s50, s46, 7")
    a("s_add_u32 s50, s50, s51")
    a("buffer_store_short v64, v10, s[32:35], s50 offen")
    a.lab("K3_END")
    a("s_endpgm")
    return a.txt(), kd(name, 112), name

def main(out, dbg=False, B1M=1, D0=6, QAT=16):
    k2, d2, n2 = gen_f(dbg, B1M, D0, QAT)
    k3, d3, n3 = gen_k3()
    s = f"""; generated by gen12.py
; @launch kernel={n2} grid=(256,1,1) block=(640,1,1) lds={gen7.LDS_F}
; @launch kernel={n3} grid=(368,1,1) block=(512,1,1) lds=17408
.amdgcn_target "amdgcn-amd-amdhsa--gfx950"
.text
"""
    s += k2 + k3
    s += '.section .rodata,"a"\n' + d2 + d3
    open(out, "w").write(s)
if __name__ == "__main__":
    main(sys.argv[1], sys.argv[2] == "dbg", int(sys.argv[3]), int(sys.argv[4]), int(sys.argv[5]))
```

```python
import sys, struct
from gen1 import A, srd, kd, kstart, rbf, sigmoid, f2u, PFX, WS_SIZE
from gen2 import LOG2E, SCALE
from gen4 import QP, GP, UP, PWS, STW, stamp
import gen12
from gen12 import DPART, SPIN
QL  = 0x20000
LDS_F = 0x20400
OOB = 0x7FFF0000
MAXU = 5
O = 192

def block_task2(a, sc_sreg, sc1, mid=None):
    a("v_lshrrev_b32 v6, 3, v2")
    a("v_and_b32 v7, 7, v2")
    a("v_and_b32 v5, 3, v2")
    a("v_mul_lo_u32 v8, v6, s34")
    a("v_lshl_add_u32 v8, v7, 4, v8")
    a("s_lshl_b32 s38, s34, 3")
    for i in range(16):
        a(f"buffer_load_dwordx4 v[{32+4*i}:{35+4*i}], v8, s[44:47], s37 offen nt")
        if i < 15: a("s_add_u32 s37, s37, s38")
    a("v_lshlrev_b32 v9, 10, v5")
    a("v_lshl_add_u32 v9, v3, 4, v9")
    for j in range(4):
        a(f"buffer_load_dwordx4 v[{16+4*j}:{19+4*j}], v9, s[28:31], s39 offen offset:{j*64}")
    if mid: mid()
    a("v_lshlrev_b32 v10, 4, v2")
    a(f"v_add_u32 v10, s{sc_sreg}, v10")
    a("v_lshrrev_b32 v11, 2, v4")
    a("v_lshl_add_u32 v11, v3, 3, v11")
    a("v_lshlrev_b32 v11, 7, v11")
    a("v_lshl_add_u32 v11, v5, 3, v11")
    a(f"v_add_u32 v11, s{sc_sreg}, v11")
    a("s_waitcnt vmcnt(0)")
    for i in range(16):
        a(f"ds_write_b128 v10, v[{32+4*i}:{35+4*i}] offset:{i*1024}")
    a("s_waitcnt lgkmcnt(0)")
    for nt in range(4):
        for j in range(4):
            q = 32 + 4*(nt*4+j)
            a(f"ds_read_b64_tr_b16 v[{q}:{q+1}], v11 offset:{j*4096+nt*32}")
            a(f"ds_read_b64_tr_b16 v[{q+2}:{q+3}], v11 offset:{j*4096+nt*32+512}")
    a("s_waitcnt lgkmcnt(0)")
    for nt in range(4):
        for j in range(4):
            q = 32 + 4*(nt*4+j)
            c = "0" if j == 0 else f"v[{96+4*nt}:{99+4*nt}]"
            a(f"v_mfma_f32_16x16x32_bf16 v[{96+4*nt}:{99+4*nt}], v[{q}:{q+3}], v[{16+4*j}:{19+4*j}], {c}")
    a("v_mul_lo_u32 v12, v4, s36")
    a("v_lshl_add_u32 v12, v3, 4, v12")
    a("v_cmp_gt_u32 vcc, 4, v4")
    a("s_and_saveexec_b64 s[42:43], vcc")
    a("s_nop 7")
    for nt in range(4):
        a(f"buffer_store_dwordx4 v[{96+4*nt}:{99+4*nt}], v12, s[24:27], s40 offen offset:{nt*64}{sc1}")
    a("s_mov_b64 exec, s[42:43]")

def core(a, NT, dbg, D0):
    a("v_and_b32 v5, 7, v4")
    a("v_lshlrev_b32 v5, 8, v5")
    a("v_lshrrev_b32 v6, 3, v4")
    a("v_lshl_add_u32 v6, v6, 2, v3")
    a("v_lshl_add_u32 v5, v6, 4, v5")
    a("v_lshlrev_b32 v6, 1, v3")
    a("v_xor_b32 v7, v4, v6")
    a("v_lshlrev_b32 v7, 4, v7")
    a("v_lshl_add_u32 v7, v3, 8, v7")
    a("v_xor_b32 v8, 0x80, v7")
    a("s_lshl_b32 s34, s2, 3")
    a("s_add_u32 s34, s34, s20")
    a("s_mul_i32 s34, s34, 0x9E3779B1")
    a("s_lshl_b32 s36, s22, 1")
    a("s_mul_hi_u32 s34, s34, s36")
    for t in range(2*MAXU):
        a(f"s_add_u32 s35, s34, {t}")
        a("s_cmp_ge_u32 s35, s36")
        a("s_cselect_b32 s37, s36, 0")
        a("s_sub_u32 s35, s35, s37")
        a("s_lshl_b32 s35, s35, 12")
        a("s_add_u32 s35, s35, s21")
        a(f"s_cmp_lt_u32 {t}, s36")
        a(f"s_cselect_b32 s{64+t}, s35, s43")
    KB = 64
    cnt = [0]
    def pace():
        if cnt[0] >= D0 and cnt[0] < 48: a(f"s_waitcnt vmcnt({D0-1})")
        cnt[0] += 1
    def issue_k(u):
        for tt in range(2):
            t = 2*u + tt
            for j in range(4):
                q = KB + ((t&7)*4+j)*4
                pace()
                a(f"buffer_load_dwordx4 v[{q}:{q+3}], v5, s[12:15], s{64+t} offen offset:{(j>>1)*2048+(j&1)*128}{NT}")
    def issue_v(u):
        for tt in range(2):
            t = 2*u + tt
            a(f"s_add_u32 m0, s23, {(t&3)*4096}")
            a("s_nop 0")
            for i in range(4):
                pace()
                a(f"buffer_load_dwordx4 v{7+(i&1)}, s[16:19], s{64+t} offen offset:{i*1024}{NT} lds")
    a("s_barrier")
    issue_k(0); issue_v(0); issue_k(1); issue_v(1); issue_k(2); issue_k(3)
    a("v_lshrrev_b32 v10, 2, v4")
    a("v_and_b32 v11, 3, v4")
    a("v_lshl_add_u32 v12, v3, 2, v10")
    a("v_and_b32 v13, 7, v12")
    a("v_lshlrev_b32 v12, 8, v12")
    a("v_lshl_add_u32 v12, v11, 3, v12")
    a("v_add_u32 v12, s23, v12")
    for t in range(8):
        a(f"v_xor_b32 v14, {t}, v13")
        a(f"v_lshl_add_u32 v{40+t}, v14, 5, v12")
    a(f"s_mov_b32 s41, {f2u(SCALE)}")
    a(f"s_mov_b32 s42, 0xffff0000")
    a("s_barrier")
    stamp(a, 1, dbg)
    a("v_lshlrev_b32 v9, 8, v11")
    a("v_and_b32 v14, 1, v10")
    a("v_lshl_add_u32 v9, v14, 6, v9")
    a("v_lshl_add_u32 v9, v3, 4, v9")
    a(f"v_add_u32 v9, {QL}, v9")
    for ln in range(2):
        a(f"ds_read_b128 v[{16+4*ln}:{19+4*ln}], v9 offset:{ln*128}")
    a("s_waitcnt lgkmcnt(0)")
    S = 48; P = 32; VF = 48
    M, L, T0, T1, AL = 10, 11, 12, 13, 14
    kw = [40, 40, 32, 32, 24]; vw = [40, 32, 8, 8, 0]
    for u in range(MAXU):
        if u == 4:
            a(f"s_cmp_le_u32 s22, {u}")
            a("s_cbranch_scc1 F_LOOPD")
        a(f"s_waitcnt vmcnt({kw[u]})")
        DD = [24, 28, 56, 60]
        for tt in range(2):
            t = 2*u + tt
            for hb in range(2):
                d = DD[2*tt+hb]
                for ln in range(2):
                    q = KB + ((t&7)*4 + hb*2 + ln)*4
                    c = "0" if ln == 0 else f"v[{d}:{d+3}]"
                    a(f"v_mfma_f32_16x16x32_bf16 v[{d}:{d+3}], v[{q}:{q+3}], v[{16+4*ln}:{19+4*ln}], {c}")
        a("s_nop 7")
        if u == 0: issue_k(4)
        else: a("s_nop 3")
        for tt in range(2):
            for r in range(4):
                a(f"v_permlane32_swap_b32 v{DD[2*tt]+r}, v{DD[2*tt+1]+r}")
        a("s_nop 1")
        for tt in range(2):
            for r in range(4):
                a(f"v_add_f32_dpp v{S+4*tt+r}, v{DD[2*tt+1]+r}, v{DD[2*tt]+r} row_shl:4 row_mask:0xf bank_mask:0xf bound_ctrl:1")
        for k in range(0, 8, 2):
            a(f"v_cvt_pk_bf16_f32 v{T0}, v{S+k}, v{S+k+1}")
            a(f"v_lshlrev_b32 v{S+k}, 16, v{T0}")
            a(f"v_and_b32 v{S+k+1}, s42, v{T0}")
            a(f"v_mul_f32 v{S+k}, s41, v{S+k}")
            a(f"v_mul_f32 v{S+k+1}, s41, v{S+k+1}")
            a(f"v_cvt_pk_bf16_f32 v{T0}, v{S+k}, v{S+k+1}")
            a(f"v_lshlrev_b32 v{S+k}, 16, v{T0}")
            a(f"v_and_b32 v{S+k+1}, s42, v{T0}")
        a(f"v_max3_f32 v{T0}, v{S}, v{S+1}, v{S+2}")
        a(f"v_max3_f32 v{T0}, v{T0}, v{S+3}, v{S+4}")
        a(f"v_max3_f32 v{T0}, v{T0}, v{S+5}, v{S+6}")
        a(f"v_max_f32 v{T0}, v{T0}, v{S+7}")
        a(f"v_mov_b32 v{T1}, v{T0}")
        a("s_nop 1")
        a(f"v_permlane32_swap_b32 v{T0}, v{T1}")
        a("s_nop 1")
        a(f"v_max_f32 v{T0}, v{T0}, v{T1}")
        a(f"v_mov_b32 v{T1}, v{T0}")
        a("s_nop 1")
        a(f"v_permlane16_swap_b32 v{T0}, v{T1}")
        a("s_nop 1")
        a(f"v_max_f32 v{T0}, v{T0}, v{T1}")
        if u == 0:
            a(f"v_mov_b32 v{M}, v{T0}")
        else:
            a(f"v_max_f32 v{T0}, v{T0}, v{M}")
            a(f"v_sub_f32 v{AL}, v{M}, v{T0}")
            a(f"v_mul_f32 v{AL}, s40, v{AL}")
            a(f"v_exp_f32 v{AL}, v{AL}")
            a(f"v_mov_b32 v{M}, v{T0}")
        for k in range(8):
            a(f"v_sub_f32 v{S+k}, v{S+k}, v{M}")
        for k in range(8):
            a(f"v_mul_f32 v{S+k}, s40, v{S+k}")
        for k in range(8):
            a(f"v_exp_f32 v{S+k}, v{S+k}")
        a("s_nop 0")
        if u == 0:
            a(f"v_add_f32 v{L}, v{S}, v{S+1}")
            ks = 2
        else:
            a(f"v_fma_f32 v{L}, v{L}, v{AL}, v{S}")
            ks = 1
            for k in range(32):
                a(f"v_mul_f32 v{O+k}, v{O+k}, v{AL}")
        for k in range(ks, 8):
            a(f"v_add_f32 v{L}, v{L}, v{S+k}")
        for k in range(4):
            a(f"v_cvt_pk_bf16_f32 v{P+k}, v{S+2*k}, v{S+2*k+1}")
        a(f"s_waitcnt vmcnt({vw[u]})")
        vo = (u & 1) * 8192
        for th in range(2):
            for t4 in range(4):
                t = th*4 + t4
                a(f"ds_read_b64_tr_b16 v[{VF+4*t4}:{VF+4*t4+1}], v{40+t} offset:{vo}")
                a(f"ds_read_b64_tr_b16 v[{VF+4*t4+2}:{VF+4*t4+3}], v{40+t} offset:{vo+4096}")
            for t4 in range(4):
                t = th*4 + t4
                a(f"s_waitcnt lgkmcnt({6-2*t4})")
                c = "0" if u == 0 else f"v[{O+4*t}:{O+4*t+3}]"
                a(f"v_mfma_f32_16x16x32_bf16 v[{O+4*t}:{O+4*t+3}], v[{VF+4*t4}:{VF+4*t4+3}], v[{P}:{P+3}], {c}")
            if th == 0: a("s_nop 7")
        if u + 2 < MAXU: issue_v(u+2)
        a("s_nop 7")
    a.lab("F_LOOPD")
    a("s_waitcnt vmcnt(0)")
    a("s_nop 3")
    a(f"v_mov_b32 v{T1}, v{L}")
    a("s_nop 1")
    a(f"v_permlane32_swap_b32 v{L}, v{T1}")
    a("s_nop 1")
    a(f"v_add_f32 v{L}, v{L}, v{T1}")
    a(f"v_mov_b32 v{T1}, v{L}")
    a("s_nop 1")
    a(f"v_permlane16_swap_b32 v{L}, v{T1}")
    a("s_nop 1")
    a(f"v_add_f32 v{L}, v{L}, v{T1}")

def merge7(a):
    a("v_max3_f32 v10, v16, v18, v20")
    a("v_max3_f32 v10, v10, v22, v24")
    a("v_max3_f32 v10, v10, v26, v28")
    for w in range(7):
        a(f"v_sub_f32 v{16+2*w}, v{16+2*w}, v10")
        a(f"v_mul_f32 v{16+2*w}, s40, v{16+2*w}")
        a(f"v_exp_f32 v{16+2*w}, v{16+2*w}")
    a("s_nop 0")
    a("v_mul_f32 v11, v16, v17")
    a("v_mul_f32 v12, v16, v32")
    for w in range(1, 7):
        a(f"v_fma_f32 v11, v{16+2*w}, v{17+2*w}, v11")
        a(f"v_fma_f32 v12, v{16+2*w}, v{32+w}, v12")

def gen_f(NT=" nt", dbg=False, D0=8):
    a = A(); name = PFX + "_f_kernel"
    kstart(a, name)
    a("s_cmp_ge_u32 s2, 256")
    a("s_cbranch_scc1 F_END")
    a("s_load_dwordx4 s[4:7], s[0:1], 8")
    a("s_load_dwordx4 s[8:11], s[0:1], 88")
    a("s_load_dwordx2 s[50:51], s[0:1], 0")
    a("s_load_dwordx2 s[52:53], s[0:1], 24")
    a("s_load_dwordx4 s[56:59], s[0:1], 48")
    a("v_lshrrev_b32 v1, 6, v0")
    a("v_and_b32 v2, 63, v0")
    a("v_readfirstlane_b32 s20, v1")
    a("v_lshrrev_b32 v3, 4, v2")
    a("v_and_b32 v4, 15, v2")
    a("s_lshr_b32 s32, s2, 6")
    a("s_lshr_b32 s33, s2, 3")
    a("s_xor_b32 s86, s2, s33")
    a("s_and_b32 s86, s86, 7")
    a("s_and_b32 s33, s33, 7")
    a("s_lshl_b32 s23, s20, 14")
    a("s_waitcnt lgkmcnt(0)")
    srd(a, 24, 10, WS_SIZE)
    stamp(a, 0, dbg)
    a("s_cmp_eq_u32 s20, 7")
    a("s_cbranch_scc1 F_AUX")
    srd(a, 12, 4, 0x4000000)
    srd(a, 16, 6, 0x4000000)
    a(f"s_mov_b32 s43, {OOB}")
    a(f"s_mov_b32 s40, {f2u(LOG2E)}")
    a("s_cmp_ge_u32 s20, 2")
    a("s_cbranch_scc1 F_NI")
    for k in range(12, 16): a(f"v_mov_b32 v{k}, -1")
    a("v_lshlrev_b32 v5, 4, v2")
    a("s_cmp_eq_u32 s20, 1")
    a("s_cbranch_scc1 F_I1")
    a("s_lshr_b32 s41, s2, 5")
    a("s_mul_i32 s41, s41, 46")
    a("s_and_b32 s42, s2, 31")
    a("s_add_u32 s41, s41, s42")
    a("s_branch F_IS")
    a.lab("F_I1")
    a("s_cmp_ge_u32 s2, 112")
    a("s_cbranch_scc1 F_NI")
    a("s_and_b32 s41, s2, 7")
    a("s_mul_i32 s41, s41, 46")
    a("s_lshr_b32 s42, s2, 3")
    a("s_add_u32 s41, s41, s42")
    a("s_add_u32 s41, s41, 32")
    a.lab("F_IS")
    a("s_lshl_b32 s41, s41, 10")
    a(f"s_add_u32 s41, s41, {DPART}")
    a("buffer_store_dwordx4 v[12:15], v5, s[24:27], s41 offen")
    a("s_nop 1")
    a.lab("F_NI")
    a("s_min_u32 s34, s20, 4")
    a("s_lshl_b32 s35, s20, 2")
    a("s_add_u32 s34, s34, s35")
    a("s_cmp_lt_u32 s20, 4")
    a("s_cselect_b32 s22, 5, 4")
    a("s_lshl_b32 s21, s86, 5")
    a("s_add_u32 s21, s21, s34")
    a("s_lshl_b32 s21, s21, 13")
    a("s_lshr_b32 s34, s2, 3")
    a("s_lshl_b32 s34, s34, 21")
    a("s_add_u32 s21, s21, s34")
    core(a, NT, dbg, D0)
    M, L = 10, 11
    a("v_lshlrev_b32 v5, 9, v4")
    a("v_lshl_add_u32 v5, v3, 4, v5")
    a("v_add_u32 v5, s23, v5")
    a("v_lshlrev_b32 v6, 3, v4")
    a("v_add_u32 v6, s23, v6")
    a("v_cmp_gt_u32 vcc, 4, v4")
    a("s_and_saveexec_b64 s[36:37], vcc")
    for t in range(8):
        a(f"ds_write_b128 v5, v[{O+4*t}:{O+4*t+3}] offset:{t*64}")
    a(f"ds_write_b64 v6, v[{M}:{L}] offset:2048")
    a("s_mov_b64 exec, s[36:37]")
    stamp(a, 2, dbg)
    a("s_waitcnt lgkmcnt(0)")
    a.lab("F_MERGE")
    a("s_barrier")
    a("v_lshrrev_b32 v5, 7, v0")
    a("v_lshlrev_b32 v5, 3, v5")
    a("v_lshlrev_b32 v6, 2, v0")
    a("v_add_u32 v7, 0x10000, v5")
    a("v_add_u32 v8, 0x10000, v6")
    for w in range(7):
        a(f"ds_read_b64 v[{16+2*w}:{17+2*w}], v{5 if w<4 else 7} offset:{(w&3)*16384+2048}")
        a(f"ds_read_b32 v{32+w}, v{6 if w<4 else 8} offset:{(w&3)*16384}")
    a("s_waitcnt lgkmcnt(0)")
    merge7(a)
    a("s_lshl_b32 s34, s2, 12")
    a(f"s_add_u32 s34, s34, {PWS}")
    a("buffer_store_dword v12, v6, s[24:27], s34 offen")
    a("v_and_b32 v7, 127, v0")
    a("v_cmp_eq_u32 vcc, 0, v7")
    a("s_and_saveexec_b64 s[36:37], vcc")
    a("buffer_store_dwordx2 v[10:11], v5, s[24:27], s34 offen offset:2048")
    a("s_mov_b64 exec, s[36:37]")
    stamp(a, 3, dbg)
    a("s_endpgm")
    a.lab("F_AUX")
    srd(a, 28, 50, 4096)
    srd(a, 80, 8, 256)
    srd(a, 44, 52, 512*8192)
    a("s_movk_i32 s34, 0x2000")
    a("s_mov_b32 s36, 0x4000")
    a("s_and_b32 s35, s2, 63")
    a("s_lshl_b32 s37, s32, 20")
    a("s_lshl_b32 s38, s35, 7")
    a("s_add_u32 s37, s37, s38")
    a("s_lshl_b32 s39, s32, 8")
    a("s_lshl_b32 s40, s32, 16")
    a("s_lshl_b32 s38, s35, 8")
    a("s_add_u32 s40, s40, s38")
    a(f"s_add_u32 s40, s40, {QP}")
    block_task2(a, 23, " sc1", lambda: a("s_barrier"))
    a("s_waitcnt vmcnt(0)")
    stamp(a, 4, dbg)
    a("s_lshl_b32 s49, s33, 5")
    a("v_mov_b32 v14, 0")
    a("v_mov_b32 v15, 1")
    a("v_cmp_eq_u32 vcc, 0, v2")
    a("s_and_saveexec_b64 s[42:43], vcc")
    a("buffer_atomic_add v15, v14, s[80:83], s49 offen sc0 sc1")
    a("s_waitcnt vmcnt(0)")
    a("v_readfirstlane_b32 s54, v15")
    a("s_add_u32 s54, s54, 1")
    a("s_cmp_ge_u32 s54, 32")
    a("s_cbranch_scc1 F_GOTQ")
    a(f"s_mov_b32 s55, {SPIN}")
    a.lab("F_POLL")
    a("s_sleep 8")
    a("buffer_load_dword v15, v14, s[80:83], s49 offen sc1")
    a("s_waitcnt vmcnt(0)")
    a("v_readfirstlane_b32 s54, v15")
    a("s_sub_u32 s55, s55, 1")
    a("s_cmp_eq_u32 s55, 0")
    a("s_cbranch_scc1 F_GOTQ")
    a("s_cmp_lt_u32 s54, 32")
    a("s_cbranch_scc1 F_POLL")
    a.lab("F_GOTQ")
    a("s_mov_b64 exec, s[42:43]")
    stamp(a, 5, dbg)
    a("s_lshl_b32 s49, s32, 14")
    a("s_lshl_b32 s54, s33, 11")
    a("s_add_u32 s49, s49, s54")
    a("v_lshlrev_b32 v14, 5, v2")
    for kb in range(4):
        a(f"s_add_u32 s54, s49, {QP+kb*65536}")
        a(f"buffer_load_dwordx4 v[{16+8*kb}:{19+8*kb}], v14, s[24:27], s54 offen sc1")
        a(f"buffer_load_dwordx4 v[{20+8*kb}:{23+8*kb}], v14, s[24:27], s54 offen offset:16 sc1")
    a("v_lshlrev_b32 v14, 4, v2")
    a(f"v_add_u32 v14, {QL}, v14")
    a("s_waitcnt vmcnt(0)")
    for k in range(8):
        a(f"v_add_f32 v{16+k}, v{16+k}, v{24+k}")
        a(f"v_add_f32 v{32+k}, v{32+k}, v{40+k}")
    for k in range(8):
        a(f"v_add_f32 v{16+k}, v{16+k}, v{32+k}")
    for k in range(4):
        a(f"v_cvt_pk_bf16_f32 v{16+k}, v{16+2*k}, v{17+2*k}")
    a("ds_write_b128 v14, v[16:19]")
    a("s_waitcnt lgkmcnt(0)")
    stamp(a, 6, dbg)
    a("s_barrier")
    a("s_cmp_ge_u32 s2, 224")
    a("s_cbranch_scc1 F_AD")
    a("s_and_b32 s48, s2, 3")
    a("s_lshr_b32 s35, s2, 2")
    a(f"s_mov_b32 s40, {GP}")
    a("s_mov_b32 s44, s56")
    a("s_mov_b32 s45, s57")
    a("s_cmp_lt_u32 s35, 28")
    a("s_cbranch_scc1 F_G")
    a("s_sub_u32 s35, s35, 28")
    a(f"s_mov_b32 s40, {UP}")
    a("s_mov_b32 s44, s58")
    a("s_mov_b32 s45, s59")
    a.lab("F_G")
    a("s_and_b32 s45, s45, 0xffff")
    a(f"s_mov_b32 s46, {512*3584}")
    a("s_mov_b32 s47, 0x00020000")
    a("s_movk_i32 s34, 3584")
    a("s_movk_i32 s36, 7168")
    a(f"s_mul_i32 s37, s48, {128*3584}")
    a("s_lshl_b32 s38, s35, 7")
    a("s_add_u32 s37, s37, s38")
    a("s_lshl_b32 s39, s48, 8")
    a(f"s_mul_i32 s38, s48, {4*7168}")
    a("s_add_u32 s40, s40, s38")
    a("s_lshl_b32 s38, s35, 8")
    a("s_add_u32 s40, s40, s38")
    block_task2(a, 23, "")
    stamp(a, 7, dbg)
    a.lab("F_AD")
    a(f"s_mov_b32 s40, {f2u(LOG2E)}")
    a("s_branch F_MERGE")
    a.lab("F_END")
    a("s_endpgm")
    return a.txt(), kd(name, 224), name

def main(out, dbg=False, D0=8):
    k2, d2, n2 = gen_f(" nt", dbg, D0)
    k3, d3, n3 = gen12.gen_k3()
    s = f"""; generated by gen14.py
; @launch kernel={n2} grid=(256,1,1) block=(512,1,1) lds={LDS_F}
; @launch kernel={n3} grid=(368,1,1) block=(512,1,1) lds=17408
.amdgcn_target "amdgcn-amd-amdhsa--gfx950"
.text
"""
    s += k2 + k3
    s += '.section .rodata,"a"\n' + d2 + d3
    open(out, "w").write(s)
if __name__ == "__main__":
    main(sys.argv[1], sys.argv[2] == "dbg", int(sys.argv[3]))
```

```python
import sys, struct
from gen1 import A, srd, kd, kstart, rbf, sigmoid, f2u, PFX, WS_SIZE
from gen2 import LOG2E, SCALE
from gen4 import QP, GP, UP, PWS, STW, stamp
import gen12
from gen12 import DPART, SPIN
QL  = 0x20000
LDS_F = 0x20400
OOB = 0x7FFF0000
MAXU = 5
O = 192

def bt_issue(a, srdn, WB, XB):
    a("v_lshrrev_b32 v6, 3, v2")
    a("v_and_b32 v7, 7, v2")
    a("v_and_b32 v5, 3, v2")
    a("v_mul_lo_u32 v8, v6, s34")
    a("v_lshl_add_u32 v8, v7, 4, v8")
    a("s_lshl_b32 s38, s34, 3")
    for i in range(16):
        a(f"buffer_load_dwordx4 v[{WB+4*i}:{WB+4*i+3}], v8, s[{srdn}:{srdn+3}], s37 offen nt")
        if i < 15: a("s_add_u32 s37, s37, s38")
    a("v_lshlrev_b32 v9, 10, v5")
    a("v_lshl_add_u32 v9, v3, 4, v9")
    for j in range(4):
        a(f"buffer_load_dwordx4 v[{XB+4*j}:{XB+4*j+3}], v9, s[28:31], s39 offen offset:{j*64}")

def bt_compute(a, WB, XB, DB, sbs, sout, sc1):
    a("v_lshlrev_b32 v10, 4, v2")
    a("v_add_u32 v10, s23, v10")
    a("v_lshrrev_b32 v11, 2, v4")
    a("v_lshl_add_u32 v11, v3, 3, v11")
    a("v_lshlrev_b32 v11, 7, v11")
    a("v_lshl_add_u32 v11, v5, 3, v11")
    a("v_add_u32 v11, s23, v11")
    for i in range(16):
        a(f"ds_write_b128 v10, v[{WB+4*i}:{WB+4*i+3}] offset:{i*1024}")
    a("s_waitcnt lgkmcnt(0)")
    for nt in range(4):
        for j in range(4):
            q = WB + 4*(nt*4+j)
            a(f"ds_read_b64_tr_b16 v[{q}:{q+1}], v11 offset:{j*4096+nt*32}")
            a(f"ds_read_b64_tr_b16 v[{q+2}:{q+3}], v11 offset:{j*4096+nt*32+512}")
    a("s_waitcnt lgkmcnt(0)")
    for nt in range(4):
        for j in range(4):
            q = WB + 4*(nt*4+j)
            c = "0" if j == 0 else f"v[{DB+4*nt}:{DB+4*nt+3}]"
            a(f"v_mfma_f32_16x16x32_bf16 v[{DB+4*nt}:{DB+4*nt+3}], v[{q}:{q+3}], v[{XB+4*j}:{XB+4*j+3}], {c}")
    a(f"v_mul_lo_u32 v12, v4, s{sbs}")
    a("v_lshl_add_u32 v12, v3, 4, v12")
    a("v_cmp_gt_u32 vcc, 4, v4")
    a("s_and_saveexec_b64 s[42:43], vcc")
    a("s_nop 7")
    for nt in range(4):
        a(f"buffer_store_dwordx4 v[{DB+4*nt}:{DB+4*nt+3}], v12, s[24:27], s{sout} offen offset:{nt*64}{sc1}")
    a("s_mov_b64 exec, s[42:43]")

def core(a, NT, dbg, D0):
    a("v_and_b32 v5, 7, v4")
    a("v_lshlrev_b32 v5, 8, v5")
    a("v_lshrrev_b32 v6, 3, v4")
    a("v_lshl_add_u32 v6, v6, 2, v3")
    a("v_lshl_add_u32 v5, v6, 4, v5")
    a("v_lshlrev_b32 v6, 1, v3")
    a("v_xor_b32 v7, v4, v6")
    a("v_lshlrev_b32 v7, 4, v7")
    a("v_lshl_add_u32 v7, v3, 8, v7")
    a("v_xor_b32 v8, 0x80, v7")
    a("s_lshl_b32 s34, s2, 3")
    a("s_add_u32 s34, s34, s20")
    a("s_mul_i32 s34, s34, 0x9E3779B1")
    a("s_lshl_b32 s36, s22, 1")
    a("s_mul_hi_u32 s34, s34, s36")
    for t in range(2*MAXU):
        a(f"s_add_u32 s35, s34, {t}")
        a("s_cmp_ge_u32 s35, s36")
        a("s_cselect_b32 s37, s36, 0")
        a("s_sub_u32 s35, s35, s37")
        a("s_lshl_b32 s35, s35, 12")
        a("s_add_u32 s35, s35, s21")
        a(f"s_cmp_lt_u32 {t}, s36")
        a(f"s_cselect_b32 s{64+t}, s35, s43")
    KB = 64
    cnt = [0]
    def pace():
        if cnt[0] >= D0 and cnt[0] < 48: a(f"s_waitcnt vmcnt({D0-1})")
        cnt[0] += 1
    def issue_k(u):
        for tt in range(2):
            t = 2*u + tt
            for j in range(4):
                q = KB + ((t&7)*4+j)*4
                pace()
                a(f"buffer_load_dwordx4 v[{q}:{q+3}], v5, s[12:15], s{64+t} offen offset:{(j>>1)*2048+(j&1)*128}{NT}")
    def issue_v(u):
        for tt in range(2):
            t = 2*u + tt
            a(f"s_add_u32 m0, s23, {(t&3)*4096}")
            a("s_nop 0")
            for i in range(4):
                pace()
                a(f"buffer_load_dwordx4 v{7+(i&1)}, s[16:19], s{64+t} offen offset:{i*1024}{NT} lds")
    a("s_barrier")
    issue_k(0); issue_v(0); issue_k(1); issue_v(1); issue_k(2); issue_k(3)
    a("v_lshrrev_b32 v10, 2, v4")
    a("v_and_b32 v11, 3, v4")
    a("v_lshl_add_u32 v12, v3, 2, v10")
    a("v_and_b32 v13, 7, v12")
    a("v_lshlrev_b32 v12, 8, v12")
    a("v_lshl_add_u32 v12, v11, 3, v12")
    a("v_add_u32 v12, s23, v12")
    for t in range(8):
        a(f"v_xor_b32 v14, {t}, v13")
        a(f"v_lshl_add_u32 v{40+t}, v14, 5, v12")
    a(f"s_mov_b32 s41, {f2u(SCALE)}")
    a(f"s_mov_b32 s42, 0xffff0000")
    a("s_barrier")
    stamp(a, 1, dbg)
    a("v_lshlrev_b32 v9, 8, v11")
    a("v_and_b32 v14, 1, v10")
    a("v_lshl_add_u32 v9, v14, 6, v9")
    a("v_lshl_add_u32 v9, v3, 4, v9")
    a(f"v_add_u32 v9, {QL}, v9")
    for ln in range(2):
        a(f"ds_read_b128 v[{16+4*ln}:{19+4*ln}], v9 offset:{ln*128}")
    a("s_waitcnt lgkmcnt(0)")
    S = 48; P = 32; VF = 48
    M, L, T0, T1, AL = 10, 11, 12, 13, 14
    kw = [40, 40, 32, 32, 24]; vw = [40, 32, 8, 8, 0]
    for u in range(MAXU):
        if u == 4:
            a(f"s_cmp_le_u32 s22, {u}")
            a("s_cbranch_scc1 F_LOOPD")
        a(f"s_waitcnt vmcnt({kw[u]})")
        DD = [24, 28, 56, 60]
        for tt in range(2):
            t = 2*u + tt
            for hb in range(2):
                d = DD[2*tt+hb]
                for ln in range(2):
                    q = KB + ((t&7)*4 + hb*2 + ln)*4
                    c = "0" if ln == 0 else f"v[{d}:{d+3}]"
                    a(f"v_mfma_f32_16x16x32_bf16 v[{d}:{d+3}], v[{q}:{q+3}], v[{16+4*ln}:{19+4*ln}], {c}")
        a("s_nop 7")
        if u == 0: issue_k(4)
        else: a("s_nop 3")
        for tt in range(2):
            for r in range(4):
                a(f"v_permlane32_swap_b32 v{DD[2*tt]+r}, v{DD[2*tt+1]+r}")
        a("s_nop 1")
        for tt in range(2):
            for r in range(4):
                a(f"v_add_f32_dpp v{S+4*tt+r}, v{DD[2*tt+1]+r}, v{DD[2*tt]+r} row_shl:4 row_mask:0xf bank_mask:0xf bound_ctrl:1")
        for k in range(0, 8, 2):
            a(f"v_cvt_pk_bf16_f32 v{T0}, v{S+k}, v{S+k+1}")
            a(f"v_lshlrev_b32 v{S+k}, 16, v{T0}")
            a(f"v_and_b32 v{S+k+1}, s42, v{T0}")
            a(f"v_mul_f32 v{S+k}, s41, v{S+k}")
            a(f"v_mul_f32 v{S+k+1}, s41, v{S+k+1}")
            a(f"v_cvt_pk_bf16_f32 v{T0}, v{S+k}, v{S+k+1}")
            a(f"v_lshlrev_b32 v{S+k}, 16, v{T0}")
            a(f"v_and_b32 v{S+k+1}, s42, v{T0}")
        a(f"v_max3_f32 v{T0}, v{S}, v{S+1}, v{S+2}")
        a(f"v_max3_f32 v{T0}, v{T0}, v{S+3}, v{S+4}")
        a(f"v_max3_f32 v{T0}, v{T0}, v{S+5}, v{S+6}")
        a(f"v_max_f32 v{T0}, v{T0}, v{S+7}")
        a(f"v_mov_b32 v{T1}, v{T0}")
        a("s_nop 1")
        a(f"v_permlane32_swap_b32 v{T0}, v{T1}")
        a("s_nop 1")
        a(f"v_max_f32 v{T0}, v{T0}, v{T1}")
        a(f"v_mov_b32 v{T1}, v{T0}")
        a("s_nop 1")
        a(f"v_permlane16_swap_b32 v{T0}, v{T1}")
        a("s_nop 1")
        a(f"v_max_f32 v{T0}, v{T0}, v{T1}")
        if u == 0:
            a(f"v_mov_b32 v{M}, v{T0}")
        else:
            a(f"v_max_f32 v{T0}, v{T0}, v{M}")
            a(f"v_sub_f32 v{AL}, v{M}, v{T0}")
            a(f"v_mul_f32 v{AL}, s40, v{AL}")
            a(f"v_exp_f32 v{AL}, v{AL}")
            a(f"v_mov_b32 v{M}, v{T0}")
        for k in range(8):
            a(f"v_sub_f32 v{S+k}, v{S+k}, v{M}")
        for k in range(8):
            a(f"v_mul_f32 v{S+k}, s40, v{S+k}")
        for k in range(8):
            a(f"v_exp_f32 v{S+k}, v{S+k}")
        a("s_nop 0")
        if u == 0:
            a(f"v_add_f32 v{L}, v{S}, v{S+1}")
            ks = 2
        else:
            a(f"v_fma_f32 v{L}, v{L}, v{AL}, v{S}")
            ks = 1
            for k in range(32):
                a(f"v_mul_f32 v{O+k}, v{O+k}, v{AL}")
        for k in range(ks, 8):
            a(f"v_add_f32 v{L}, v{L}, v{S+k}")
        for k in range(4):
            a(f"v_cvt_pk_bf16_f32 v{P+k}, v{S+2*k}, v{S+2*k+1}")
        a(f"s_waitcnt vmcnt({vw[u]})")
        vo = (u & 1) * 8192
        for th in range(2):
            for t4 in range(4):
                t = th*4 + t4
                a(f"ds_read_b64_tr_b16 v[{VF+4*t4}:{VF+4*t4+1}], v{40+t} offset:{vo}")
                a(f"ds_read_b64_tr_b16 v[{VF+4*t4+2}:{VF+4*t4+3}], v{40+t} offset:{vo+4096}")
            for t4 in range(4):
                t = th*4 + t4
                a(f"s_waitcnt lgkmcnt({6-2*t4})")
                c = "0" if u == 0 else f"v[{O+4*t}:{O+4*t+3}]"
                a(f"v_mfma_f32_16x16x32_bf16 v[{O+4*t}:{O+4*t+3}], v[{VF+4*t4}:{VF+4*t4+3}], v[{P}:{P+3}], {c}")
            if th == 0: a("s_nop 7")
        if u + 2 < MAXU: issue_v(u+2)
        a("s_nop 7")
    a.lab("F_LOOPD")
    a("s_waitcnt vmcnt(0)")
    a("s_nop 3")
    a(f"v_mov_b32 v{T1}, v{L}")
    a("s_nop 1")
    a(f"v_permlane32_swap_b32 v{L}, v{T1}")
    a("s_nop 1")
    a(f"v_add_f32 v{L}, v{L}, v{T1}")
    a(f"v_mov_b32 v{T1}, v{L}")
    a("s_nop 1")
    a(f"v_permlane16_swap_b32 v{L}, v{T1}")
    a("s_nop 1")
    a(f"v_add_f32 v{L}, v{L}, v{T1}")

def merge7(a):
    a("v_max3_f32 v10, v16, v18, v20")
    a("v_max3_f32 v10, v10, v22, v24")
    a("v_max3_f32 v10, v10, v26, v28")
    for w in range(7):
        a(f"v_sub_f32 v{16+2*w}, v{16+2*w}, v10")
        a(f"v_mul_f32 v{16+2*w}, s40, v{16+2*w}")
        a(f"v_exp_f32 v{16+2*w}, v{16+2*w}")
    a("s_nop 0")
    a("v_mul_f32 v11, v16, v17")
    a("v_mul_f32 v12, v16, v32")
    for w in range(1, 7):
        a(f"v_fma_f32 v11, v{16+2*w}, v{17+2*w}, v11")
        a(f"v_fma_f32 v12, v{16+2*w}, v{32+w}, v12")

def gen_f(NT=" nt", dbg=False, D0=8):
    a = A(); name = PFX + "_f_kernel"
    kstart(a, name)
    a("s_cmp_ge_u32 s2, 256")
    a("s_cbranch_scc1 F_END")
    a("s_load_dwordx4 s[4:7], s[0:1], 8")
    a("s_load_dwordx4 s[8:11], s[0:1], 88")
    a("s_load_dwordx2 s[50:51], s[0:1], 0")
    a("s_load_dwordx2 s[52:53], s[0:1], 24")
    a("s_load_dwordx4 s[56:59], s[0:1], 48")
    a("v_lshrrev_b32 v1, 6, v0")
    a("v_and_b32 v2, 63, v0")
    a("v_readfirstlane_b32 s20, v1")
    a("v_lshrrev_b32 v3, 4, v2")
    a("v_and_b32 v4, 15, v2")
    a("s_lshr_b32 s32, s2, 6")
    a("s_lshr_b32 s33, s2, 3")
    a("s_xor_b32 s86, s2, s33")
    a("s_and_b32 s86, s86, 7")
    a("s_and_b32 s33, s33, 7")
    a("s_lshl_b32 s23, s20, 14")
    a("s_waitcnt lgkmcnt(0)")
    srd(a, 24, 10, WS_SIZE)
    stamp(a, 0, dbg)
    a("s_cmp_eq_u32 s20, 7")
    a("s_cbranch_scc1 F_AUX")
    srd(a, 12, 4, 0x4000000)
    srd(a, 16, 6, 0x4000000)
    a(f"s_mov_b32 s43, {OOB}")
    a(f"s_mov_b32 s40, {f2u(LOG2E)}")
    a("s_cmp_ge_u32 s20, 2")
    a("s_cbranch_scc1 F_NI")
    for k in range(12, 16): a(f"v_mov_b32 v{k}, -1")
    a("v_lshlrev_b32 v5, 4, v2")
    a("s_cmp_eq_u32 s20, 1")
    a("s_cbranch_scc1 F_I1")
    a("s_lshr_b32 s41, s2, 5")
    a("s_mul_i32 s41, s41, 46")
    a("s_and_b32 s42, s2, 31")
    a("s_add_u32 s41, s41, s42")
    a("s_branch F_IS")
    a.lab("F_I1")
    a("s_cmp_ge_u32 s2, 112")
    a("s_cbranch_scc1 F_NI")
    a("s_and_b32 s41, s2, 7")
    a("s_mul_i32 s41, s41, 46")
    a("s_lshr_b32 s42, s2, 3")
    a("s_add_u32 s41, s41, s42")
    a("s_add_u32 s41, s41, 32")
    a.lab("F_IS")
    a("s_lshl_b32 s41, s41, 10")
    a(f"s_add_u32 s41, s41, {DPART}")
    a("buffer_store_dwordx4 v[12:15], v5, s[24:27], s41 offen")
    a("s_nop 1")
    a.lab("F_NI")
    a("s_min_u32 s34, s20, 4")
    a("s_lshl_b32 s35, s20, 2")
    a("s_add_u32 s34, s34, s35")
    a("s_cmp_lt_u32 s20, 4")
    a("s_cselect_b32 s22, 5, 4")
    a("s_lshl_b32 s21, s86, 5")
    a("s_add_u32 s21, s21, s34")
    a("s_lshl_b32 s21, s21, 13")
    a("s_lshr_b32 s34, s2, 3")
    a("s_lshl_b32 s34, s34, 21")
    a("s_add_u32 s21, s21, s34")
    core(a, NT, dbg, D0)
    M, L = 10, 11
    a("v_lshlrev_b32 v5, 9, v4")
    a("v_lshl_add_u32 v5, v3, 4, v5")
    a("v_add_u32 v5, s23, v5")
    a("v_lshlrev_b32 v6, 3, v4")
    a("v_add_u32 v6, s23, v6")
    a("v_cmp_gt_u32 vcc, 4, v4")
    a("s_and_saveexec_b64 s[36:37], vcc")
    for t in range(8):
        a(f"ds_write_b128 v5, v[{O+4*t}:{O+4*t+3}] offset:{t*64}")
    a(f"ds_write_b64 v6, v[{M}:{L}] offset:2048")
    a("s_mov_b64 exec, s[36:37]")
    stamp(a, 2, dbg)
    a("s_waitcnt lgkmcnt(0)")
    a.lab("F_MERGE")
    a("s_barrier")
    a("v_lshrrev_b32 v5, 7, v0")
    a("v_lshlrev_b32 v5, 3, v5")
    a("v_lshlrev_b32 v6, 2, v0")
    a("v_add_u32 v7, 0x10000, v5")
    a("v_add_u32 v8, 0x10000, v6")
    for w in range(7):
        a(f"ds_read_b64 v[{16+2*w}:{17+2*w}], v{5 if w<4 else 7} offset:{(w&3)*16384+2048}")
        a(f"ds_read_b32 v{32+w}, v{6 if w<4 else 8} offset:{(w&3)*16384}")
    a("s_waitcnt lgkmcnt(0)")
    merge7(a)
    a("s_lshl_b32 s34, s2, 12")
    a(f"s_add_u32 s34, s34, {PWS}")
    a("buffer_store_dword v12, v6, s[24:27], s34 offen")
    a("v_and_b32 v7, 127, v0")
    a("v_cmp_eq_u32 vcc, 0, v7")
    a("s_and_saveexec_b64 s[36:37], vcc")
    a("buffer_store_dwordx2 v[10:11], v5, s[24:27], s34 offen offset:2048")
    a("s_mov_b64 exec, s[36:37]")
    stamp(a, 3, dbg)
    a("s_endpgm")
    a.lab("F_AUX")
    srd(a, 28, 50, 4096)
    srd(a, 80, 8, 256)
    srd(a, 44, 52, 512*8192)
    a("s_movk_i32 s34, 0x2000")
    a("s_mov_b32 s36, 0x4000")
    a("s_and_b32 s35, s2, 63")
    a("s_lshl_b32 s37, s32, 20")
    a("s_lshl_b32 s38, s35, 7")
    a("s_add_u32 s37, s37, s38")
    a("s_lshl_b32 s39, s32, 8")
    a("s_lshl_b32 s40, s32, 16")
    a("s_lshl_b32 s38, s35, 8")
    a("s_add_u32 s40, s40, s38")
    a(f"s_add_u32 s40, s40, {QP}")
    bt_issue(a, 44, 32, 16)
    a("s_min_u32 s87, s2, 223")
    a("s_and_b32 s48, s87, 3")
    a("s_lshr_b32 s35, s87, 2")
    a(f"s_mov_b32 s88, {GP}")
    a("s_mov_b32 s76, s56")
    a("s_mov_b32 s77, s57")
    a("s_cmp_lt_u32 s35, 28")
    a("s_cbranch_scc1 F_G")
    a("s_sub_u32 s35, s35, 28")
    a(f"s_mov_b32 s88, {UP}")
    a("s_mov_b32 s76, s58")
    a("s_mov_b32 s77, s59")
    a.lab("F_G")
    a("s_and_b32 s77, s77, 0xffff")
    a(f"s_mov_b32 s78, {512*3584}")
    a("s_mov_b32 s79, 0x00020000")
    a("s_movk_i32 s34, 3584")
    a("s_movk_i32 s89, 7168")
    a(f"s_mul_i32 s37, s48, {128*3584}")
    a("s_lshl_b32 s38, s35, 7")
    a("s_add_u32 s37, s37, s38")
    a("s_lshl_b32 s39, s48, 8")
    a(f"s_mul_i32 s38, s48, {4*7168}")
    a("s_add_u32 s88, s88, s38")
    a("s_lshl_b32 s38, s35, 8")
    a("s_add_u32 s88, s88, s38")
    a("s_cmp_ge_u32 s2, 224")
    a("s_cbranch_scc1 F_NOGU")
    bt_issue(a, 76, 128, 112)
    a("s_barrier")
    a("s_waitcnt vmcnt(20)")
    a("s_branch F_QC")
    a.lab("F_NOGU")
    a("s_barrier")
    a("s_waitcnt vmcnt(0)")
    a.lab("F_QC")
    bt_compute(a, 32, 16, 96, 36, 40, " sc1")
    a("s_waitcnt vmcnt(0)")
    stamp(a, 4, dbg)
    a("s_lshl_b32 s49, s33, 5")
    a("v_mov_b32 v14, 0")
    a("v_mov_b32 v28, 1")
    a("v_cmp_eq_u32 vcc, 0, v2")
    a("s_and_saveexec_b64 s[42:43], vcc")
    a("buffer_atomic_add v28, v14, s[80:83], s49 offen sc0 sc1")
    a("s_waitcnt vmcnt(0)")
    a("v_readfirstlane_b32 s54, v28")
    a("s_add_u32 s54, s54, 1")
    a("s_cmp_ge_u32 s54, 32")
    a("s_cbranch_scc1 F_GOTQ")
    a(f"s_mov_b32 s55, {SPIN}")
    a.lab("F_POLL")
    a("s_sleep 8")
    a("buffer_load_dword v15, v14, s[80:83], s49 offen sc1")
    a("s_waitcnt vmcnt(0)")
    a("v_readfirstlane_b32 s54, v15")
    a("s_sub_u32 s55, s55, 1")
    a("s_cmp_eq_u32 s55, 0")
    a("s_cbranch_scc1 F_GOTQ")
    a("s_cmp_lt_u32 s54, 32")
    a("s_cbranch_scc1 F_POLL")
    a.lab("F_GOTQ")
    a("s_mov_b64 exec, s[42:43]")
    stamp(a, 5, dbg)
    a("s_lshl_b32 s49, s32, 14")
    a("s_lshl_b32 s54, s33, 11")
    a("s_add_u32 s49, s49, s54")
    a("v_lshlrev_b32 v14, 5, v2")
    for kb in range(4):
        a(f"s_add_u32 s54, s49, {QP+kb*65536}")
        a(f"buffer_load_dwordx4 v[{16+8*kb}:{19+8*kb}], v14, s[24:27], s54 offen sc1")
        a(f"buffer_load_dwordx4 v[{20+8*kb}:{23+8*kb}], v14, s[24:27], s54 offen offset:16 sc1")
    a("v_lshlrev_b32 v14, 4, v2")
    a(f"v_add_u32 v14, {QL}, v14")
    a("s_waitcnt vmcnt(0)")
    for k in range(8):
        a(f"v_add_f32 v{16+k}, v{16+k}, v{24+k}")
        a(f"v_add_f32 v{32+k}, v{32+k}, v{40+k}")
    for k in range(8):
        a(f"v_add_f32 v{16+k}, v{16+k}, v{32+k}")
    for k in range(4):
        a(f"v_cvt_pk_bf16_f32 v{16+k}, v{16+2*k}, v{17+2*k}")
    a("ds_write_b128 v14, v[16:19]")
    a("s_waitcnt lgkmcnt(0)")
    stamp(a, 6, dbg)
    a("s_barrier")
    a("s_cmp_ge_u32 s2, 224")
    a("s_cbranch_scc1 F_AD")
    bt_compute(a, 128, 112, 192, 89, 88, "")
    stamp(a, 7, dbg)
    a.lab("F_AD")
    a(f"s_mov_b32 s40, {f2u(LOG2E)}")
    a("s_branch F_MERGE")
    a.lab("F_END")
    a("s_endpgm")
    return a.txt(), kd(name, 224), name

def main(out, dbg=False, D0=8):
    k2, d2, n2 = gen_f(" nt", dbg, D0)
    k3, d3, n3 = gen12.gen_k3()
    s = f"""; generated by gen15.py
; @launch kernel={n2} grid=(256,1,1) block=(512,1,1) lds={LDS_F}
; @launch kernel={n3} grid=(368,1,1) block=(512,1,1) lds=17408
.amdgcn_target "amdgcn-amd-amdhsa--gfx950"
.text
"""
    s += k2 + k3
    s += '.section .rodata,"a"\n' + d2 + d3
    open(out, "w").write(s)
if __name__ == "__main__":
    main(sys.argv[1], sys.argv[2] == "dbg", int(sys.argv[3]))
```

```python
import sys, struct
from gen1 import A, srd, kd, kstart, rbf, sigmoid, f2u, PFX, WS_SIZE
from gen2 import LOG2E, SCALE
from gen4 import QP, GP, UP, PWS, STW, stamp
import gen12
from gen12 import DPART, SPIN
QL  = 0x20000
LDS_F = 0x20400
OOB = 0x7FFF0000
MAXU = 5
WARM = False
B1POS = 0
O = 192

def bt_issue(a, srdn, WB, XB):
    a("v_lshrrev_b32 v6, 3, v2")
    a("v_and_b32 v7, 7, v2")
    a("v_and_b32 v5, 3, v2")
    a("v_mul_lo_u32 v8, v6, s34")
    a("v_lshl_add_u32 v8, v7, 4, v8")
    a("s_lshl_b32 s38, s34, 3")
    for i in range(16):
        a(f"buffer_load_dwordx4 v[{WB+4*i}:{WB+4*i+3}], v8, s[{srdn}:{srdn+3}], s37 offen nt")
        if i < 15: a("s_add_u32 s37, s37, s38")
    a("v_lshlrev_b32 v9, 10, v5")
    a("v_lshl_add_u32 v9, v3, 4, v9")
    for j in range(4):
        a(f"buffer_load_dwordx4 v[{XB+4*j}:{XB+4*j+3}], v9, s[28:31], s39 offen offset:{j*64}")

def bt_compute(a, WB, XB, DB, sbs, sout, sc1):
    a("v_lshlrev_b32 v10, 4, v2")
    a("v_add_u32 v10, s23, v10")
    a("v_lshrrev_b32 v11, 2, v4")
    a("v_lshl_add_u32 v11, v3, 3, v11")
    a("v_lshlrev_b32 v11, 7, v11")
    a("v_lshl_add_u32 v11, v5, 3, v11")
    a("v_add_u32 v11, s23, v11")
    for i in range(16):
        a(f"ds_write_b128 v10, v[{WB+4*i}:{WB+4*i+3}] offset:{i*1024}")
    a("s_waitcnt lgkmcnt(0)")
    for nt in range(4):
        for j in range(4):
            q = WB + 4*(nt*4+j)
            a(f"ds_read_b64_tr_b16 v[{q}:{q+1}], v11 offset:{j*4096+nt*32}")
            a(f"ds_read_b64_tr_b16 v[{q+2}:{q+3}], v11 offset:{j*4096+nt*32+512}")
    a("s_waitcnt lgkmcnt(0)")
    for nt in range(4):
        for j in range(4):
            q = WB + 4*(nt*4+j)
            c = "0" if j == 0 else f"v[{DB+4*nt}:{DB+4*nt+3}]"
            a(f"v_mfma_f32_16x16x32_bf16 v[{DB+4*nt}:{DB+4*nt+3}], v[{q}:{q+3}], v[{XB+4*j}:{XB+4*j+3}], {c}")
    a(f"v_mul_lo_u32 v12, v4, s{sbs}")
    a("v_lshl_add_u32 v12, v3, 4, v12")
    a("v_cmp_gt_u32 vcc, 4, v4")
    a("s_and_saveexec_b64 s[42:43], vcc")
    a("s_nop 7")
    for nt in range(4):
        a(f"buffer_store_dwordx4 v[{DB+4*nt}:{DB+4*nt+3}], v12, s[24:27], s{sout} offen offset:{nt*64}{sc1}")
    a("s_mov_b64 exec, s[42:43]")

def core(a, NT, dbg, D0):
    a("v_and_b32 v5, 7, v4")
    a("v_lshlrev_b32 v5, 8, v5")
    a("v_lshrrev_b32 v6, 3, v4")
    a("v_lshl_add_u32 v6, v6, 2, v3")
    a("v_lshl_add_u32 v5, v6, 4, v5")
    a("v_lshlrev_b32 v6, 1, v3")
    a("v_xor_b32 v7, v4, v6")
    a("v_lshlrev_b32 v7, 4, v7")
    a("v_lshl_add_u32 v7, v3, 8, v7")
    a("v_xor_b32 v8, 0x80, v7")
    a("s_lshl_b32 s34, s2, 3")
    a("s_add_u32 s34, s34, s20")
    a("s_mul_i32 s34, s34, 0x9E3779B1")
    a("s_lshl_b32 s36, s22, 1")
    a("s_mul_hi_u32 s34, s34, s36")
    for t in range(2*MAXU):
        a(f"s_add_u32 s35, s34, {t}")
        a("s_cmp_ge_u32 s35, s36")
        a("s_cselect_b32 s37, s36, 0")
        a("s_sub_u32 s35, s35, s37")
        a("s_lshl_b32 s35, s35, 12")
        a("s_add_u32 s35, s35, s21")
        a(f"s_cmp_lt_u32 {t}, s36")
        a(f"s_cselect_b32 s{64+t}, s35, s43")
    KB = 64
    cnt = [0]
    def pace():
        if cnt[0] >= D0 and cnt[0] < 48: a(f"s_waitcnt vmcnt({D0-1})")
        cnt[0] += 1
    def issue_k(u):
        for tt in range(2):
            t = 2*u + tt
            for j in range(4):
                q = KB + ((t&7)*4+j)*4
                pace()
                a(f"buffer_load_dwordx4 v[{q}:{q+3}], v5, s[12:15], s{64+t} offen offset:{(j>>1)*2048+(j&1)*128}{NT}")
    def issue_v(u):
        for tt in range(2):
            t = 2*u + tt
            a(f"s_add_u32 m0, s23, {(t&3)*4096}")
            a("s_nop 0")
            for i in range(4):
                pace()
                a(f"buffer_load_dwordx4 v{7+(i&1)}, s[16:19], s{64+t} offen offset:{i*1024}{NT} lds")
    a("s_barrier")
    issue_k(0); issue_v(0); issue_k(1); issue_v(1); issue_k(2); issue_k(3)
    a("v_lshrrev_b32 v10, 2, v4")
    a("v_and_b32 v11, 3, v4")
    a("v_lshl_add_u32 v12, v3, 2, v10")
    a("v_and_b32 v13, 7, v12")
    a("v_lshlrev_b32 v12, 8, v12")
    a("v_lshl_add_u32 v12, v11, 3, v12")
    a("v_add_u32 v12, s23, v12")
    for t in range(8):
        a(f"v_xor_b32 v14, {t}, v13")
        a(f"v_lshl_add_u32 v{40+t}, v14, 5, v12")
    a(f"s_mov_b32 s41, {f2u(SCALE)}")
    a(f"s_mov_b32 s42, 0xffff0000")
    a("s_barrier")
    stamp(a, 1, dbg)
    a("v_lshlrev_b32 v9, 8, v11")
    a("v_and_b32 v14, 1, v10")
    a("v_lshl_add_u32 v9, v14, 6, v9")
    a("v_lshl_add_u32 v9, v3, 4, v9")
    a(f"v_add_u32 v9, {QL}, v9")
    for ln in range(2):
        a(f"ds_read_b128 v[{16+4*ln}:{19+4*ln}], v9 offset:{ln*128}")
    a("s_waitcnt lgkmcnt(0)")
    S = 48; P = 32; VF = 48
    M, L, T0, T1, AL = 10, 11, 12, 13, 14
    kw = [40, 40, 32, 32, 24]; vw = [40, 32, 8, 8, 0]
    for u in range(MAXU):
        if u == 4:
            a(f"s_cmp_le_u32 s22, {u}")
            a("s_cbranch_scc1 F_LOOPD")
        a(f"s_waitcnt vmcnt({kw[u]})")
        DD = [24, 28, 56, 60]
        for tt in range(2):
            t = 2*u + tt
            for hb in range(2):
                d = DD[2*tt+hb]
                for ln in range(2):
                    q = KB + ((t&7)*4 + hb*2 + ln)*4
                    c = "0" if ln == 0 else f"v[{d}:{d+3}]"
                    a(f"v_mfma_f32_16x16x32_bf16 v[{d}:{d+3}], v[{q}:{q+3}], v[{16+4*ln}:{19+4*ln}], {c}")
        a("s_nop 7")
        if u == 0: issue_k(4)
        else: a("s_nop 3")
        for tt in range(2):
            for r in range(4):
                a(f"v_permlane32_swap_b32 v{DD[2*tt]+r}, v{DD[2*tt+1]+r}")
        a("s_nop 1")
        for tt in range(2):
            for r in range(4):
                a(f"v_add_f32_dpp v{S+4*tt+r}, v{DD[2*tt+1]+r}, v{DD[2*tt]+r} row_shl:4 row_mask:0xf bank_mask:0xf bound_ctrl:1")
        for k in range(0, 8, 2):
            a(f"v_cvt_pk_bf16_f32 v{T0}, v{S+k}, v{S+k+1}")
            a(f"v_lshlrev_b32 v{S+k}, 16, v{T0}")
            a(f"v_and_b32 v{S+k+1}, s42, v{T0}")
            a(f"v_mul_f32 v{S+k}, s41, v{S+k}")
            a(f"v_mul_f32 v{S+k+1}, s41, v{S+k+1}")
            a(f"v_cvt_pk_bf16_f32 v{T0}, v{S+k}, v{S+k+1}")
            a(f"v_lshlrev_b32 v{S+k}, 16, v{T0}")
            a(f"v_and_b32 v{S+k+1}, s42, v{T0}")
        a(f"v_max3_f32 v{T0}, v{S}, v{S+1}, v{S+2}")
        a(f"v_max3_f32 v{T0}, v{T0}, v{S+3}, v{S+4}")
        a(f"v_max3_f32 v{T0}, v{T0}, v{S+5}, v{S+6}")
        a(f"v_max_f32 v{T0}, v{T0}, v{S+7}")
        a(f"v_mov_b32 v{T1}, v{T0}")
        a("s_nop 1")
        a(f"v_permlane32_swap_b32 v{T0}, v{T1}")
        a("s_nop 1")
        a(f"v_max_f32 v{T0}, v{T0}, v{T1}")
        a(f"v_mov_b32 v{T1}, v{T0}")
        a("s_nop 1")
        a(f"v_permlane16_swap_b32 v{T0}, v{T1}")
        a("s_nop 1")
        a(f"v_max_f32 v{T0}, v{T0}, v{T1}")
        if u == 0:
            a(f"v_mov_b32 v{M}, v{T0}")
        else:
            a(f"v_max_f32 v{T0}, v{T0}, v{M}")
            a(f"v_sub_f32 v{AL}, v{M}, v{T0}")
            a(f"v_mul_f32 v{AL}, s40, v{AL}")
            a(f"v_exp_f32 v{AL}, v{AL}")
            a(f"v_mov_b32 v{M}, v{T0}")
        for k in range(8):
            a(f"v_sub_f32 v{S+k}, v{S+k}, v{M}")
        for k in range(8):
            a(f"v_mul_f32 v{S+k}, s40, v{S+k}")
        for k in range(8):
            a(f"v_exp_f32 v{S+k}, v{S+k}")
        a("s_nop 0")
        if u == 0:
            a(f"v_add_f32 v{L}, v{S}, v{S+1}")
            ks = 2
        else:
            a(f"v_fma_f32 v{L}, v{L}, v{AL}, v{S}")
            ks = 1
            for k in range(32):
                a(f"v_mul_f32 v{O+k}, v{O+k}, v{AL}")
        for k in range(ks, 8):
            a(f"v_add_f32 v{L}, v{L}, v{S+k}")
        for k in range(4):
            a(f"v_cvt_pk_bf16_f32 v{P+k}, v{S+2*k}, v{S+2*k+1}")
        a(f"s_waitcnt vmcnt({vw[u]})")
        vo = (u & 1) * 8192
        for th in range(2):
            for t4 in range(4):
                t = th*4 + t4
                a(f"ds_read_b64_tr_b16 v[{VF+4*t4}:{VF+4*t4+1}], v{40+t} offset:{vo}")
                a(f"ds_read_b64_tr_b16 v[{VF+4*t4+2}:{VF+4*t4+3}], v{40+t} offset:{vo+4096}")
            for t4 in range(4):
                t = th*4 + t4
                a(f"s_waitcnt lgkmcnt({6-2*t4})")
                c = "0" if u == 0 else f"v[{O+4*t}:{O+4*t+3}]"
                a(f"v_mfma_f32_16x16x32_bf16 v[{O+4*t}:{O+4*t+3}], v[{VF+4*t4}:{VF+4*t4+3}], v[{P}:{P+3}], {c}")
            if th == 0: a("s_nop 7")
        if u + 2 < MAXU: issue_v(u+2)
        a("s_nop 7")
    a.lab("F_LOOPD")
    a("s_waitcnt vmcnt(0)")
    a("s_nop 3")
    a(f"v_mov_b32 v{T1}, v{L}")
    a("s_nop 1")
    a(f"v_permlane32_swap_b32 v{L}, v{T1}")
    a("s_nop 1")
    a(f"v_add_f32 v{L}, v{L}, v{T1}")
    a(f"v_mov_b32 v{T1}, v{L}")
    a("s_nop 1")
    a(f"v_permlane16_swap_b32 v{L}, v{T1}")
    a("s_nop 1")
    a(f"v_add_f32 v{L}, v{L}, v{T1}")

def merge7(a):
    a("v_max3_f32 v10, v16, v18, v20")
    a("v_max3_f32 v10, v10, v22, v24")
    a("v_max3_f32 v10, v10, v26, v28")
    for w in range(7):
        a(f"v_sub_f32 v{16+2*w}, v{16+2*w}, v10")
        a(f"v_mul_f32 v{16+2*w}, s40, v{16+2*w}")
        a(f"v_exp_f32 v{16+2*w}, v{16+2*w}")
    a("s_nop 0")
    a("v_mul_f32 v11, v16, v17")
    a("v_mul_f32 v12, v16, v32")
    for w in range(1, 7):
        a(f"v_fma_f32 v11, v{16+2*w}, v{17+2*w}, v11")
        a(f"v_fma_f32 v12, v{16+2*w}, v{32+w}, v12")

def gen_f(NT=" nt", dbg=False, D0=8):
    a = A(); name = PFX + "_f_kernel"
    kstart(a, name)
    a("s_cmp_ge_u32 s2, 256")
    a("s_cbranch_scc1 F_END")
    a("s_load_dwordx4 s[4:7], s[0:1], 8")
    a("s_load_dwordx4 s[8:11], s[0:1], 88")
    a("s_load_dwordx2 s[50:51], s[0:1], 0")
    a("s_load_dwordx2 s[52:53], s[0:1], 24")
    a("s_load_dwordx4 s[56:59], s[0:1], 48")
    a("v_lshrrev_b32 v1, 6, v0")
    a("v_and_b32 v2, 63, v0")
    a("v_readfirstlane_b32 s20, v1")
    a("v_lshrrev_b32 v3, 4, v2")
    a("v_and_b32 v4, 15, v2")
    a("s_lshr_b32 s32, s2, 6")
    a("s_lshr_b32 s33, s2, 3")
    a("s_xor_b32 s86, s2, s33")
    a("s_and_b32 s86, s86, 7")
    a("s_and_b32 s33, s33, 7")
    a("s_lshl_b32 s23, s20, 14")
    a("s_waitcnt lgkmcnt(0)")
    srd(a, 24, 10, WS_SIZE)
    stamp(a, 0, dbg)
    a("s_cmp_eq_u32 s20, 7")
    a("s_cbranch_scc1 F_AUX")
    srd(a, 12, 4, 0x4000000)
    srd(a, 16, 6, 0x4000000)
    a(f"s_mov_b32 s43, {OOB}")
    a(f"s_mov_b32 s40, {f2u(LOG2E)}")
    a("s_cmp_ge_u32 s20, 2")
    a("s_cbranch_scc1 F_NI")
    for k in range(12, 16): a(f"v_mov_b32 v{k}, -1")
    a("v_lshlrev_b32 v5, 4, v2")
    a("s_cmp_eq_u32 s20, 1")
    a("s_cbranch_scc1 F_I1")
    a("s_lshr_b32 s41, s2, 5")
    a("s_mul_i32 s41, s41, 46")
    a("s_and_b32 s42, s2, 31")
    a("s_add_u32 s41, s41, s42")
    a("s_branch F_IS")
    a.lab("F_I1")
    a("s_cmp_ge_u32 s2, 112")
    a("s_cbranch_scc1 F_NI")
    a("s_and_b32 s41, s2, 7")
    a("s_mul_i32 s41, s41, 46")
    a("s_lshr_b32 s42, s2, 3")
    a("s_add_u32 s41, s41, s42")
    a("s_add_u32 s41, s41, 32")
    a.lab("F_IS")
    a("s_lshl_b32 s41, s41, 10")
    a(f"s_add_u32 s41, s41, {DPART}")
    a("buffer_store_dwordx4 v[12:15], v5, s[24:27], s41 offen")
    a("s_nop 1")
    a.lab("F_NI")
    a("s_min_u32 s34, s20, 4")
    a("s_lshl_b32 s35, s20, 2")
    a("s_add_u32 s34, s34, s35")
    a("s_cmp_lt_u32 s20, 4")
    a("s_cselect_b32 s22, 5, 4")
    a("s_lshl_b32 s21, s86, 5")
    a("s_add_u32 s21, s21, s34")
    a("s_lshl_b32 s21, s21, 13")
    a("s_lshr_b32 s34, s2, 3")
    a("s_lshl_b32 s34, s34, 21")
    a("s_add_u32 s21, s21, s34")
    core(a, NT, dbg, D0)
    M, L = 10, 11
    a("v_lshlrev_b32 v5, 9, v4")
    a("v_lshl_add_u32 v5, v3, 4, v5")
    a("v_add_u32 v5, s23, v5")
    a("v_lshlrev_b32 v6, 3, v4")
    a("v_add_u32 v6, s23, v6")
    a("v_cmp_gt_u32 vcc, 4, v4")
    a("s_and_saveexec_b64 s[36:37], vcc")
    for t in range(8):
        a(f"ds_write_b128 v5, v[{O+4*t}:{O+4*t+3}] offset:{t*64}")
    a(f"ds_write_b64 v6, v[{M}:{L}] offset:2048")
    a("s_mov_b64 exec, s[36:37]")
    stamp(a, 2, dbg)
    a("s_waitcnt lgkmcnt(0)")
    a.lab("F_MERGE")
    a("s_barrier")
    a("v_lshrrev_b32 v5, 7, v0")
    a("v_lshlrev_b32 v5, 3, v5")
    a("v_lshlrev_b32 v6, 2, v0")
    a("v_add_u32 v7, 0x10000, v5")
    a("v_add_u32 v8, 0x10000, v6")
    for w in range(7):
        a(f"ds_read_b64 v[{16+2*w}:{17+2*w}], v{5 if w<4 else 7} offset:{(w&3)*16384+2048}")
        a(f"ds_read_b32 v{32+w}, v{6 if w<4 else 8} offset:{(w&3)*16384}")
    a("s_waitcnt lgkmcnt(0)")
    merge7(a)
    a("s_lshl_b32 s34, s2, 12")
    a(f"s_add_u32 s34, s34, {PWS}")
    a("buffer_store_dword v12, v6, s[24:27], s34 offen")
    a("v_and_b32 v7, 127, v0")
    a("v_cmp_eq_u32 vcc, 0, v7")
    a("s_and_saveexec_b64 s[36:37], vcc")
    a("buffer_store_dwordx2 v[10:11], v5, s[24:27], s34 offen offset:2048")
    a("s_mov_b64 exec, s[36:37]")
    stamp(a, 3, dbg)
    a("s_endpgm")
    a.lab("F_AUX")
    if WARM:
        a("s_cmp_ge_u32 s2, 32")
        a("s_cbranch_scc1 F_NW")
        a("s_getpc_b64 s[90:91]")
        a.lab("F_PC")
        a(f"s_sub_u32 s90, s90, F_PC-{name}")
        a("s_subb_u32 s91, s91, 0")
        a(f"s_mov_b32 s92, K3_END-{name}")
        a("v_lshlrev_b32 v200, 6, v2")
        for i in range(4):
            a("v_min_u32 v205, s92, v200")
            a(f"global_load_dword v{201+i}, v205, s[90:91]")
            if i < 3: a("v_add_u32 v200, 0x1000, v200")
        a.lab("F_NW")
    srd(a, 28, 50, 4096)
    srd(a, 80, 8, 256)
    srd(a, 44, 52, 512*8192)
    a("s_movk_i32 s34, 0x2000")
    a("s_mov_b32 s36, 0x4000")
    a("s_and_b32 s35, s2, 63")
    a("s_lshl_b32 s37, s32, 20")
    a("s_lshl_b32 s38, s35, 7")
    a("s_add_u32 s37, s37, s38")
    a("s_lshl_b32 s39, s32, 8")
    a("s_lshl_b32 s40, s32, 16")
    a("s_lshl_b32 s38, s35, 8")
    a("s_add_u32 s40, s40, s38")
    a(f"s_add_u32 s40, s40, {QP}")
    bt_issue(a, 44, 32, 16)
    a("s_min_u32 s87, s2, 223")
    a("s_and_b32 s48, s87, 3")
    a("s_lshr_b32 s35, s87, 2")
    a(f"s_mov_b32 s88, {GP}")
    a("s_mov_b32 s76, s56")
    a("s_mov_b32 s77, s57")
    a("s_cmp_lt_u32 s35, 28")
    a("s_cbranch_scc1 F_G")
    a("s_sub_u32 s35, s35, 28")
    a(f"s_mov_b32 s88, {UP}")
    a("s_mov_b32 s76, s58")
    a("s_mov_b32 s77, s59")
    a.lab("F_G")
    a("s_and_b32 s77, s77, 0xffff")
    a(f"s_mov_b32 s78, {512*3584}")
    a("s_mov_b32 s79, 0x00020000")
    a("s_movk_i32 s34, 3584")
    a("s_movk_i32 s89, 7168")
    a(f"s_mul_i32 s37, s48, {128*3584}")
    a("s_lshl_b32 s38, s35, 7")
    a("s_add_u32 s37, s37, s38")
    a("s_lshl_b32 s39, s48, 8")
    a(f"s_mul_i32 s38, s48, {4*7168}")
    a("s_add_u32 s88, s88, s38")
    a("s_lshl_b32 s38, s35, 8")
    a("s_add_u32 s88, s88, s38")
    a("s_cmp_ge_u32 s2, 224")
    a("s_cbranch_scc1 F_NOGU")
    bt_issue(a, 76, 128, 112)
    if B1POS == 0: a("s_barrier")
    a("s_waitcnt vmcnt(20)")
    a("s_branch F_QC")
    a.lab("F_NOGU")
    if B1POS == 0: a("s_barrier")
    a("s_waitcnt vmcnt(0)")
    a.lab("F_QC")
    if B1POS == 1: a("s_barrier")
    bt_compute(a, 32, 16, 96, 36, 40, " sc1")
    if B1POS == 2: a("s_barrier")
    a("s_waitcnt vmcnt(0)")
    stamp(a, 4, dbg)
    a("s_lshl_b32 s49, s33, 5")
    a("v_mov_b32 v14, 0")
    a("v_mov_b32 v28, 1")
    a("v_cmp_eq_u32 vcc, 0, v2")
    a("s_and_saveexec_b64 s[42:43], vcc")
    a("buffer_atomic_add v28, v14, s[80:83], s49 offen sc0 sc1")
    a("s_waitcnt vmcnt(0)")
    a("v_readfirstlane_b32 s54, v28")
    a("s_add_u32 s54, s54, 1")
    a("s_cmp_ge_u32 s54, 32")
    a("s_cbranch_scc1 F_GOTQ")
    a(f"s_mov_b32 s55, {SPIN}")
    a.lab("F_POLL")
    a("s_sleep 8")
    a("buffer_load_dword v15, v14, s[80:83], s49 offen sc1")
    a("s_waitcnt vmcnt(0)")
    a("v_readfirstlane_b32 s54, v15")
    a("s_sub_u32 s55, s55, 1")
    a("s_cmp_eq_u32 s55, 0")
    a("s_cbranch_scc1 F_GOTQ")
    a("s_cmp_lt_u32 s54, 32")
    a("s_cbranch_scc1 F_POLL")
    a.lab("F_GOTQ")
    a("s_mov_b64 exec, s[42:43]")
    stamp(a, 5, dbg)
    a("s_lshl_b32 s49, s32, 14")
    a("s_lshl_b32 s54, s33, 11")
    a("s_add_u32 s49, s49, s54")
    a("v_lshlrev_b32 v14, 5, v2")
    for kb in range(4):
        a(f"s_add_u32 s54, s49, {QP+kb*65536}")
        a(f"buffer_load_dwordx4 v[{16+8*kb}:{19+8*kb}], v14, s[24:27], s54 offen sc1")
        a(f"buffer_load_dwordx4 v[{20+8*kb}:{23+8*kb}], v14, s[24:27], s54 offen offset:16 sc1")
    a("v_lshlrev_b32 v14, 4, v2")
    a(f"v_add_u32 v14, {QL}, v14")
    a("s_waitcnt vmcnt(0)")
    for k in range(8):
        a(f"v_add_f32 v{16+k}, v{16+k}, v{24+k}")
        a(f"v_add_f32 v{32+k}, v{32+k}, v{40+k}")
    for k in range(8):
        a(f"v_add_f32 v{16+k}, v{16+k}, v{32+k}")
    for k in range(4):
        a(f"v_cvt_pk_bf16_f32 v{16+k}, v{16+2*k}, v{17+2*k}")
    a("ds_write_b128 v14, v[16:19]")
    a("s_waitcnt lgkmcnt(0)")
    stamp(a, 6, dbg)
    a("s_barrier")
    a("s_cmp_ge_u32 s2, 224")
    a("s_cbranch_scc1 F_AD")
    bt_compute(a, 128, 112, 192, 89, 88, "")
    stamp(a, 7, dbg)
    a.lab("F_AD")
    a(f"s_mov_b32 s40, {f2u(LOG2E)}")
    a("s_branch F_MERGE")
    a.lab("F_END")
    a("s_endpgm")
    return a.txt(), kd(name, 224), name

def main(out, dbg=False, D0=8):
    k2, d2, n2 = gen_f(" nt", dbg, D0)
    k3, d3, n3 = gen12.gen_k3()
    s = f"""; generated by gen15.py
; @launch kernel={n2} grid=(256,1,1) block=(512,1,1) lds={LDS_F}
; @launch kernel={n3} grid=(368,1,1) block=(512,1,1) lds=17408
.amdgcn_target "amdgcn-amd-amdhsa--gfx950"
.text
"""
    s += k2 + k3
    s += '.section .rodata,"a"\n' + d2 + d3
    open(out, "w").write(s)
if __name__ == "__main__":
    if len(sys.argv) > 4: B1POS = int(sys.argv[4])
    main(sys.argv[1], sys.argv[2] == "dbg", int(sys.argv[3]))
```
